```python
import torch

def _softmax(x, axis=-1):
    return torch.softmax(x, dim=axis)

def _gelu(x):
    return torch.nn.functional.gelu(x, approximate='tanh')

def _silu(x):
    return torch.nn.functional.silu(x)

def _sigmoid(x):
    return torch.sigmoid(x)

def _layernorm(x, axis=-1, eps=1e-05):
    m = x.mean(dim=axis, keepdim=True)
    v = x.var(dim=axis, keepdim=True, unbiased=False)
    return (x - m) / torch.sqrt(v + eps)

def _scatter_add(tgt, idx, src, axis=0):
    return tgt.clone().index_add_(axis, idx, src)

def _segment_sum(src, seg, n):
    out = torch.zeros((n,) + src.shape[1:], dtype=src.dtype)
    return out.index_add_(0, seg, src)

def _pad(x, pw):
    flat = tuple((v for pair in reversed(pw) for v in pair))
    return torch.nn.functional.pad(x, flat)
kernel_name = 'parallel_sum__memory_aug_recurrent_mem_tr__dense_activation_relu__prompt'

def setup_inputs():

    _w = lambda a: (lambda t: t.to(torch.bfloat16) if t.is_floating_point() else t)(torch.as_tensor(a))

    def _A_setup():
        B, S, Dm = (1, 2048, 1024)
        H, Dh = (32, 128)
        M, seg = (8, 32)
        seg = min(seg, S)
        S = S // seg * seg
        return {'x': _w((lambda *s: torch.randn(*s, dtype=torch.bfloat16) * 0.05)(B, S, Dm)), 'mem0': _w((lambda *s: torch.randn(*s, dtype=torch.bfloat16) * 1.6)(B, M, Dm)), 'Wq': _w((lambda *s: torch.randn(*s, dtype=torch.bfloat16) * 0.8)(Dm, H, Dh) * Dm ** (-0.5)), 'Wk': _w((lambda *s: torch.randn(*s, dtype=torch.bfloat16) * 0.8)(Dm, H, Dh) * Dm ** (-0.5)), 'Wv': _w((lambda *s: torch.randn(*s, dtype=torch.bfloat16) * 1.6)(Dm, H, Dh) * Dm ** (-0.5)), 'Wo': _w((lambda *s: torch.randn(*s, dtype=torch.bfloat16) * 1.6)(H, Dh, Dm) * (H * Dh) ** (-0.5)), 'seg_len': seg}
    _A_in = _A_setup()

    def _B_setup():
        B, S, D, Dff = (1, 2048, 1024, 3584)
        return {'x': _w((lambda *s: torch.randn(*s, dtype=torch.bfloat16) * 0.05)(B, S, D)), 'w1': _w((lambda *s: torch.randn(*s, dtype=torch.bfloat16) * 0.05)(D, Dff)), 'w2': _w((lambda *s: torch.randn(*s, dtype=torch.bfloat16) * 0.05)(Dff, D))}
    _B_in = _B_setup()
    return {'A_x': _A_in['x'], 'A_mem0': _A_in['mem0'], 'A_Wq': _A_in['Wq'], 'A_Wk': _A_in['Wk'], 'A_Wv': _A_in['Wv'], 'A_Wo': _A_in['Wo'], 'A_seg_len': _A_in['seg_len'], 'B_x': _B_in['x'], 'B_w1': _B_in['w1'], 'B_w2': _B_in['w2']}

def reference(A_x, A_mem0, A_Wq, A_Wk, A_Wv, A_Wo, A_seg_len, B_x, B_w1, B_w2):

    def _A_ref(x, mem0, Wq, Wk, Wv, Wo, seg_len):
        B, S, Dm = x.shape
        H, Dh = (Wq.shape[1], Wq.shape[2])
        M = mem0.shape[1]
        scale = Dh ** (-0.5)
        n_seg = S // seg_len
        L = M + seg_len
        idx = torch.arange(L)
        mask = (idx[:, None] < M) | (idx[:, None] >= idx[None, :])
        mem = mem0
        outs = []
        for s in range(n_seg):
            xs = x[:, s * seg_len:(s + 1) * seg_len, :].clone()
            h = torch.concatenate([mem, xs], axis=1)
            q = torch.einsum('btd,dhe->bhte', h, Wq)
            k = torch.einsum('btd,dhe->bhte', h, Wk)
            v = torch.einsum('btd,dhe->bhte', h, Wv)
            scores = torch.einsum('bhqe,bhke->bhqk', q, k) * scale
            scores = torch.where(mask[None, None], scores, -1000000000.0)
            p = _softmax(scores, axis=-1)
            o = torch.einsum('bhqk,bhke->bhqe', p, v)
            o = torch.einsum('bhte,hed->btd', o, Wo)
            mem = o[:, :M, :].clone()
            outs.append(o[:, M:, :])
        return torch.concatenate(outs, axis=1)

    def _B_ref(x, w1, w2):
        h = torch.einsum('bsd,df->bsf', x, w1)
        zero = torch.zeros_like(h)
        h = torch.maximum(h, zero)
        return torch.einsum('bsf,fd->bsd', h, w2)
    x = A_x
    xn = _layernorm(x, axis=-1)
    return x + _A_ref(xn, A_mem0, A_Wq, A_Wk, A_Wv, A_Wo, A_seg_len) + _B_ref(xn, B_w1, B_w2)
```

```python
class Asm:
    def __init__(self):
        self.l = []
        self.nlab = 0
    def __call__(self, s=''):
        for x in s.split('\n'):
            self.l.append(x)
        return self
    def lab(self, name):
        self.l.append(name + ':')
    def newlab(self, p='L'):
        self.nlab += 1
        return f'{p}_{self.nlab}'
    def text(self):
        out = []
        for x in self.l:
            x = x.strip()
            if not x: continue
            out.append(x if x.endswith(':') or x.startswith('.') or x.startswith(';') else '  ' + x)
        return '\n'.join(out) + '\n'

def vr(b, n=1, p='v'):
    return f'{p}{b}' if n == 1 else f'{p}[{b}:{b+n-1}]'
def ar(b, n=1): return vr(b, n, 'a')
def sr(b, n=1): return vr(b, n, 's')

def interleave(main, fill, first=0, per=1):
    out = []; fi = 0
    for i, m in enumerate(main):
        out.append(m)
        if i >= first:
            for _ in range(per):
                if fi < len(fill):
                    out.append(fill[fi]); fi += 1
    out += fill[fi:]
    return out

def spread(main, fill, lo=0, hi=None):
    if hi is None: hi = len(main) - 1
    n = hi - lo + 1
    slots = [[] for _ in main]
    for k, f in enumerate(fill):
        slots[lo + (k * n) // len(fill)].append(f)
    out = []
    for m, s in zip(main, slots):
        out.append(m); out += s
    return out

def kdesc(name, vgpr=512, accum=256, sgpr=102):
    return f'''.amdhsa_kernel {name}
  .amdhsa_next_free_vgpr {vgpr}
  .amdhsa_next_free_sgpr {sgpr}
  .amdhsa_accum_offset {accum}
  .amdhsa_group_segment_fixed_size 0
  .amdhsa_kernarg_size 104
  .amdhsa_user_sgpr_count 2
  .amdhsa_user_sgpr_kernarg_segment_ptr 1
  .amdhsa_system_sgpr_workgroup_id_x 1
.end_amdhsa_kernel
'''
def khead(name):
    return f'''.globl {name}
.p2align 8
.type {name},@function
{name}:
'''
```

```python
from asmlib import *
from layout import *
import struct, math
def f32(x): return struct.unpack('<I', struct.pack('<f', x))[0]

class Attn:
    def __init__(self, a, name, v0=1, s0=46, SRD_WS=8):
        self.a, self.name, self.WS = a, name, f's[{SRD_WS}:{SRD_WS+3}]'
        n = [v0]
        def V(k=1, al=1):
            n[0] = (n[0]+al-1)//al*al; r = n[0]; n[0] += k; return r
        self.vL = V(); self.vFr = V(); self.vMr = V(); self.vDm = V(); self.vTr = V(); self.vTm = V(); self.vOw = V()
        self.t = [V() for _ in range(4)]
        self.vQ = V(32, 4); self.vK = V(32, 4); self.vKm = V(16, 4)
        self.vS = V(20, 4)
        self.vP = V(16, 4)
        self.vOne = V(8, 4); self.vLs = V(8, 4)
        self.vVt = self.vQ; self.vVm = self.vK
        self.vO = V(16, 4); self.vOut = V(8, 4)
        self.nv = n[0]
        self.sSeg, self.sHead, self.sLds, self.sCl = s0, s0+1, s0+2, s0+3
        self.sT = list(range(s0+4, s0+12)); self.mDiag = [s0+12+2*r for r in range(4)]; self.mLo = s0+20
        assert self.mDiag[0] % 2 == 0
    def init(self):
        a, t, L = self.a, self.t, self.vL
        a(f'v_and_b32 v{L}, 63, v0')
        a(f'v_and_b32 v{t[0]}, 15, v{L}\nv_lshrrev_b32 v{t[1]}, 4, v{L}\nv_lshlrev_b32 v{t[2]}, 4, v{t[1]}\nv_lshl_add_u32 v{self.vFr}, v{t[0]}, 6, v{t[2]}')
        for r in range(4):
            a(f'v_lshl_add_u32 v{t[3]}, v{t[1]}, 2, {r}\nv_cmp_le_u32 s[{self.mDiag[r]}:{self.mDiag[r]+1}], v{t[3]}, v{t[0]}')
        a(f'v_cmp_gt_u32 s[{self.mLo}:{self.mLo+1}], 2, v{t[1]}')
        a(f'v_mov_b32 v{t[3]}, {OOB}\nv_cmp_gt_u32 vcc, 8, v{t[0]}\ns_nop 1\nv_cndmask_b32 v{self.vMr}, v{t[3]}, v{self.vFr}, vcc')
        a(f'v_lshrrev_b32 v{t[3]}, 5, v{L}\nv_lshlrev_b32 v{t[3]}, 15, v{t[3]}\nv_and_b32 v{t[2]}, 31, v{L}\nv_lshl_add_u32 v{self.vDm}, v{t[2]}, 4, v{t[3]}')
        a(f'v_bfe_u32 v{t[2]}, v{L}, 2, 2\nv_lshl_add_u32 v{t[2]}, v{t[1]}, 2, v{t[2]}\nv_lshlrev_b32 v{t[2]}, 6, v{t[2]}\nv_and_b32 v{t[3]}, 3, v{L}\nv_lshl_add_u32 v{self.vTr}, v{t[3]}, 3, v{t[2]}')
        a(f'v_and_b32 v{self.vTm}, 0x1ff, v{self.vTr}\nv_add_u32 v{self.vTm}, 8192, v{self.vTm}')
        a(f'v_add_u32 v{self.vTr}, s{self.sLds}, v{self.vTr}\nv_add_u32 v{self.vTm}, s{self.sLds}, v{self.vTm}')
        a(f'v_bfe_u32 v{t[2]}, v{L}, 4, 1\nv_lshlrev_b32 v{t[2]}, 5, v{t[2]}\nv_bfe_u32 v{t[3]}, v{L}, 5, 1\nv_lshl_add_u32 v{t[2]}, v{t[3]}, 4, v{t[2]}\nv_lshl_add_u32 v{self.vOw}, v{t[0]}, 6, v{t[2]}')
        for r in range(4): a(f'v_mov_b32 v{self.vOne+r}, 0x3f803f80')
        for r in (self.vP+6, self.vP+7, self.vP+14, self.vP+15, self.vP+2, self.vP+3): a(f'v_mov_b32 v{r}, 0')
        a(f's_mov_b32 s{self.sCl}, {f32(128**-0.5*math.log2(math.e)):#x}')
    def task(self, ldsc='', stsc=''):
        a, t, sT, WS = self.a, self.t, self.sT, self.WS
        mf = lambda D, A, B, C: a(f'v_mfma_f32_16x16x32_bf16 {vr(D,4)}, {vr(A,4)}, {vr(B,4)}, {vr(D,4) if C else 0}')
        a(f's_lshl_b32 s{sT[0]}, s{self.sHead}, 19\ns_lshl_b32 s{sT[1]}, s{self.sSeg}, 11\ns_add_u32 s{sT[0]}, s{sT[0]}, s{sT[1]}')
        a(f's_lshl_b32 s{sT[1]}, s{self.sHead}, 17\ns_lshl_b32 s{sT[2]}, s{self.sSeg}, 9\ns_add_u32 s{sT[1]}, s{sT[1]}, s{sT[2]}')
        a(f'v_lshlrev_b32 v{t[0]}, 4, v{self.vL}')
        for cc in range(4):
            a(f's_add_u32 s{sT[2]}, s{sT[0]}, {OFF_Q + cc*M*64}\ns_add_u32 s{sT[3]}, s{sT[0]}, {OFF_K + cc*M*64}\ns_add_u32 s{sT[4]}, s{sT[1]}, {OFF_KM + cc*32768}')
            for b in range(2): a(f'buffer_load_dwordx4 {vr(self.vQ+(b*4+cc)*4,4)}, v{self.vFr}, {WS}, s{sT[2]} offen offset:{b*1024}{ldsc}')
            for b in range(2): a(f'buffer_load_dwordx4 {vr(self.vK+(b*4+cc)*4,4)}, v{self.vFr}, {WS}, s{sT[3]} offen offset:{b*1024}{ldsc}')
            a(f'buffer_load_dwordx4 {vr(self.vKm+cc*4,4)}, v{self.vMr}, {WS}, s{sT[4]} offen{ldsc}')
        for cc in range(4):
            a(f's_add_u32 m0, s{self.sLds}, {cc*2048}\ns_add_u32 s{sT[2]}, s{sT[0]}, {OFF_V + cc*M*64}')
            for b in range(2): a(f'buffer_load_dwordx4 v{t[0]}, {WS}, s{sT[2]} offen offset:{b*1024}{ldsc} lds')
        for k in range(2):
            a(f's_add_u32 m0, s{self.sLds}, {8192 + k*1024}\ns_add_u32 s{sT[2]}, s{sT[1]}, {OFF_VM + k*65536}')
            a(f'buffer_load_dwordx4 v{self.vDm}, {WS}, s{sT[2]} offen{ldsc} lds')
        S = self.vS
        for cc in range(4):
            a(f's_waitcnt vmcnt({10 + 5*(3-cc)})')
            mf(S, self.vKm+cc*4, self.vQ+cc*4, cc); mf(S+4, self.vK+cc*4, self.vQ+cc*4, cc)
            mf(S+8, self.vKm+cc*4, self.vQ+16+cc*4, cc); mf(S+12, self.vK+cc*4, self.vQ+16+cc*4, cc); mf(S+16, self.vK+16+cc*4, self.vQ+16+cc*4, cc)
        a('s_waitcnt vmcnt(0)')
        for eb in range(8):
            for b in range(2): a(f'ds_read_b64_tr_b16 {vr(self.vVt+eb*4+2*b,2)}, v{self.vTr} offset:{(eb>>1)*2048 + b*1024 + (eb&1)*32}')
            if eb == 3: a('s_waitcnt lgkmcnt(4)')
        a('s_waitcnt lgkmcnt(4)')
        for eb in range(8):
            a(f'ds_read_b64_tr_b16 {vr(self.vVm+eb*4,2)}, v{self.vTm} offset:{(eb>>1)*512 + (eb&1)*32}\nv_mov_b32 v{self.vVm+eb*4+2}, 0\nv_mov_b32 v{self.vVm+eb*4+3}, 0')
        a(f'v_mov_b32 v{t[3]}, 0xff800000')
        for qb in range(2):
            B = S + 8*qb; n = 8 + 4*qb; dg = B + n - 4
            for r in range(4):
                a(f'v_cndmask_b32 v{B+r}, v{t[3]}, v{B+r}, s[{self.mLo}:{self.mLo+1}]\nv_cndmask_b32 v{dg+r}, v{t[3]}, v{dg+r}, s[{self.mDiag[r]}:{self.mDiag[r]+1}]')
            a(f'v_max3_f32 v{t[0]}, v{B}, v{B+1}, v{B+2}')
            for k in range(3, n-1, 2): a(f'v_max3_f32 v{t[0]}, v{t[0]}, v{B+k}, v{B+k+1}')
            a(f'v_max_f32 v{t[0]}, v{t[0]}, v{B+n-1}')
            a(f'v_mov_b32 v{t[1]}, v{t[0]}\ns_nop 1\nv_permlane16_swap_b32 v{t[0]}, v{t[1]}\nv_max_f32 v{t[0]}, v{t[0]}, v{t[1]}')
            a(f'v_mov_b32 v{t[1]}, v{t[0]}\ns_nop 1\nv_permlane32_swap_b32 v{t[0]}, v{t[1]}\nv_max_f32 v{t[0]}, v{t[0]}, v{t[1]}')
            a(f'v_mul_f32 v{t[0]}, s{self.sCl}, v{t[0]}')
            for k in range(n): a(f'v_fma_f32 v{B+k}, v{B+k}, s{self.sCl}, -v{t[0]}')
            for k in range(n): a(f'v_exp_f32 v{B+k}, v{B+k}')
            P = self.vP + 8*qb
            a('s_nop 0')
            for k in range(2): a(f'v_cvt_pk_bf16_f32 v{P+4+k}, v{B+2*k}, v{B+2*k+1}')
            for k in range(2 + 2*qb): a(f'v_cvt_pk_bf16_f32 v{P+k}, v{B+4+2*k}, v{B+5+2*k}')
        a('s_nop 1')
        for qb in range(2):
            mf(self.vLs+4*qb, self.vOne, self.vP+8*qb, 0); mf(self.vLs+4*qb, self.vOne, self.vP+8*qb+4, 1)
        a('s_waitcnt lgkmcnt(0)')
        a(f's_add_u32 s{sT[0]}, s{sT[0]}, {OFF_O}')
        for cc in range(4):
            for qb in range(2):
                for nh in range(2):
                    D = self.vO + qb*8 + nh*4; eb = 2*cc+nh
                    mf(D, self.vVt+eb*4, self.vP+8*qb, 0); mf(D, self.vVm+eb*4, self.vP+8*qb+4, 1)
            if cc == 0: a(f'v_rcp_f32 v{t[0]}, v{self.vLs}\nv_rcp_f32 v{t[1]}, v{self.vLs+4}')
            for qb in range(2):
                D = self.vO + qb*8; O = self.vOut + qb*4
                if qb == 0: a('s_nop 3')
                for r in range(8): a(f'v_mul_f32 v{D+r}, v{D+r}, v{t[qb]}')
                for r in range(4): a(f'v_cvt_pk_bf16_f32 v{O+r}, v{D+2*r}, v{D+2*r+1}')
                a(f's_nop 1\nv_permlane16_swap_b32 v{O}, v{O+2}\nv_permlane16_swap_b32 v{O+1}, v{O+3}')
                a(f'buffer_store_dwordx4 {vr(O,4)}, v{self.vOw}, {WS}, s{sT[0]} offen offset:{qb*1024}{stsc}')
            a(f's_add_u32 s{sT[0]}, s{sT[0]}, {M*64}')

def gen_attn_kernel(name):
    a = Asm(); a(khead(name)); END = name+'_end'
    at = Attn(a, name)
    a(f's_cmp_ge_u32 s2, 512\ns_cbranch_scc1 {END}')
    a(f's_load_dwordx2 s[8:9], s[0:1], 96\ns_mov_b32 s10, {WS_SIZE}\ns_mov_b32 s11, 0x20000')
    a(f'v_lshrrev_b32 v2, 6, v0\ns_nop 0\nv_readfirstlane_b32 s3, v2\ns_mul_i32 s{at.sLds}, s3, 10240')
    a(f's_lshl_b32 s4, s2, 2\ns_add_u32 s4, s4, s3\ns_and_b32 s{at.sHead}, s4, 31\ns_lshr_b32 s{at.sSeg}, s4, 5')
    at.init(); a('s_waitcnt lgkmcnt(0)'); at.task()
    a.lab(END); a('s_endpgm')
    return a.text(), at.nv
```

```python
from asmlib import *
from layout import *

RS, MS = 192, 1552
WSTR = 3*MS
LDS_P = 19456
LDS_Z = LDS_P + 1024
LDS_TOK = 20 * 1024 + 1024
LDS_V = LDS_TOK + 20480
LDS_STAGE = 0
CHAIN_LDS = 131072

class R:
    pass

def gen_chain(a, name, nsteps=63, flat=False, local_sc1=False, stamps=False, exit_label=None, abl='', bcpos=32, bcnop=0, hier=True, nb=3, nv=2, vgap=1, prof=0):
    LS = ' sc1' if local_sc1 else ''
    DS = ' sc1' if (local_sc1 or flat) else ''
    END = exit_label
    sX, sSlot, sPar = 2, 3, 4
    sH, sC, sW = 5, 6, 7
    SRD_WS, SRD_IN = 8, 12
    sD = [16,17,18]
    sA = [19,20,21]; sA2 = 22
    sBC = [23,24,25]
    sStep, sTO, sKt, sVt, sKM = 26, 27, 28, 29, 30
    sT = list(range(32, 44)); sCl = 44
    sVt4 = [45,46,47,48]; sTok = 49; sBC3 = 31; sCr = [74,75,76]
    sStamp = 50
    n = [1]
    def V(k=1, al=1):
        n[0] = (n[0]+al-1)//al*al; r = n[0]; n[0] += k; return r
    vL = V()
    vDrd, vDwr, vBCrd, vBCwr = V(), V(), V(), V()
    vCrd, vCwr = (V(), V()) if hier else (0, 0)
    vAsr, vAmr, vAvr, vAsw, vAmw, vAvw = V(), V(), V(), V(), V(), V()
    vKt, vVt, vKMw, vVMw = V(), V(), V(), V()
    vLw, vLr, vPw, vLwk = V(), V(), V(), V()
    vPr = [V() for _ in range(6)]
    vIdx = V(); vSt = V(); vTr = V()
    t = [V() for _ in range(8)]
    vSel = V(4,4); vOneT = V(4,4); vOneM = V(4,4); vSent = V(4,4)
    vMem = V(16,4); acc = V(24,4); vX = V(32,4); vXo = V(4,4)
    vKtf = V(8,4); vS = V(12,4)
    vVm = vMem; accW = V(16,4); vWm = V(16,4)
    vVtf = V(32,4); accT = vX; vWt = V(16,4)
    vBlo = V(8,4); vBhi = V(8,4); vLs = vS+8; vF = vS; vOut = V(4,4)
    vRd = vMem; vRa = V(4,4); vRo = vOut
    vI, vHB, vG = vVtf, vVtf+1, vVtf+2
    assert n[0] <= 256, n[0]
    aW = lambda mat, ks, eb: mat*64 + ks*16 + eb*8
    aO = lambda n2, b: 192 + n2*32 + b*8
    def stamp(k, p=0):
        if stamps and (p == prof or k == 0): a(f's_memtime s[{sStamp+2*k}:{sStamp+2*k+1}]')

    a(f's_lshr_b32 s{sH}, s{sSlot}, 2\ns_lshl_b32 s{sT[0]}, s{sX}, 3\ns_add_u32 s{sH}, s{sH}, s{sT[0]}\ns_and_b32 s{sC}, s{sSlot}, 3')
    a(f'v_lshrrev_b32 v{t[0]}, 6, v0\ns_nop 0\nv_readfirstlane_b32 s{sW}, v{t[0]}')
    a(f's_load_dwordx2 s[{SRD_WS}:{SRD_WS+1}], s[0:1], 96')
    a(f's_mov_b32 s{SRD_WS+2}, {WS_SIZE}\ns_mov_b32 s{SRD_WS+3}, 0x20000\ns_mov_b32 s{SRD_IN+3}, 0x20000')
    a(f'v_and_b32 v{vL}, 63, v0\nv_and_b32 v{vI}, 7, v0\nv_bfe_u32 v{vHB}, v0, 3, 1\nv_bfe_u32 v{vG}, v0, 4, 2')
    a(f's_lshl_b32 s{sT[0]}, s{sW}, 15')
    a(f'v_lshrrev_b32 v{t[0]}, 2, v{vL}\nv_lshlrev_b32 v{t[0]}, 13, v{t[0]}\nv_and_b32 v{t[1]}, 3, v{vL}\nv_lshl_add_u32 v{t[0]}, v{t[1]}, 4, v{t[0]}')
    a(f's_lshl_b32 s{sT[1]}, s{sW}, 21\ns_lshl_b32 s{sT[2]}, s{sH}, 8\ns_add_u32 s{sT[1]}, s{sT[1]}, s{sT[2]}\ns_lshl_b32 s{sT[2]}, s{sC}, 6\ns_add_u32 s{sT[1]}, s{sT[1]}, s{sT[2]}')
    a(f'v_add_u32 v{t[0]}, s{sT[1]}, v{t[0]}')
    a(f'v_bfe_u32 v{t[1]}, v{vL}, 2, 1\nv_bfe_u32 v{t[2]}, v{vL}, 3, 1\nv_lshl_add_u32 v{t[1]}, v{t[2]}, 3, v{t[1]}')
    a(f'v_bfe_u32 v{t[2]}, v{vL}, 4, 1\nv_lshl_add_u32 v{t[1]}, v{t[2]}, 2, v{t[1]}\nv_bfe_u32 v{t[2]}, v{vL}, 5, 1\nv_lshl_add_u32 v{t[1]}, v{t[2]}, 4, v{t[1]}')
    a(f'v_lshlrev_b32 v{t[1]}, 6, v{t[1]}\nv_and_b32 v{t[2]}, 3, v{vL}\nv_lshl_add_u32 v{t[1]}, v{t[2]}, 3, v{t[1]}\nv_add_u32 v{t[1]}, s{sT[0]}, v{t[1]}')
    def stage_qkv(mat, half):
        a(f's_load_dwordx2 s[{SRD_IN}:{SRD_IN+1}], s[0:1], {16+8*mat}\ns_mov_b32 s{SRD_IN+2}, {1024*8192}\ns_waitcnt lgkmcnt(0)')
        for j in range(16):
            a(f's_add_u32 m0, s{sT[0]}, {half*16384 + j*1024}\ns_mov_b32 s{sT[3]}, {j*16*8192}')
            a(f'buffer_load_dwordx4 v{t[0]}, s[{SRD_IN}:{SRD_IN+3}], s{sT[3]} offen lds')
    def read_qkv(mat, half):
        for ks in range(4):
            for eb in range(2):
                for u in range(2):
                    for mm in range(2):
                        off = half*16384 + (ks*64 + u*32 + 2*mm)*64 + eb*32
                        a(f'ds_read_b64_tr_b16 {ar(aW(mat,ks,eb)+u*4+mm*2,2)}, v{t[1]} offset:{off}')
                a('s_waitcnt lgkmcnt(8)')
    a(f'v_lshrrev_b32 v{t[2]}, 3, v{vL}\nv_lshlrev_b32 v{t[2]}, 11, v{t[2]}\nv_lshl_add_u32 v{t[2]}, v{vI}, 4, v{t[2]}')
    a(f's_lshl_b32 s{sT[1]}, s{sH}, 18\ns_lshl_b32 s{sT[2]}, s{sC}, 9\ns_add_u32 s{sT[1]}, s{sT[1]}, s{sT[2]}\ns_lshl_b32 s{sT[2]}, s{sW}, 7\ns_add_u32 s{sT[1]}, s{sT[1]}, s{sT[2]}')
    a(f'v_add_u32 v{t[2]}, s{sT[1]}, v{t[2]}')
    a(f'v_bfe_u32 v{t[3]}, v{vL}, 2, 2\nv_lshl_add_u32 v{t[3]}, v{vG}, 3, v{t[3]}\nv_lshlrev_b32 v{t[3]}, 7, v{t[3]}\nv_and_b32 v{t[4]}, 3, v{vL}\nv_lshl_add_u32 v{t[3]}, v{t[4]}, 5, v{t[3]}\nv_add_u32 v{t[3]}, s{sT[0]}, v{t[3]}')
    def stage_o(half):
        a(f's_load_dwordx2 s[{SRD_IN}:{SRD_IN+1}], s[0:1], 40\ns_mov_b32 s{SRD_IN+2}, {4096*2048}\ns_waitcnt lgkmcnt(0)')
        for j in range(16):
            a(f's_add_u32 m0, s{sT[0]}, {half*16384 + j*1024}\ns_mov_b32 s{sT[3]}, {j*8*2048}')
            a(f'buffer_load_dwordx4 v{t[2]}, s[{SRD_IN}:{SRD_IN+3}], s{sT[3]} offen lds')
    def read_o(half):
        for n2 in range(2):
            for b in range(4):
                for u in range(2):
                    for mm in range(2):
                        off = half*16384 + (n2*64 + u*32 + mm*4)*128 + (b>>1)*16 + (b&1)*8
                        a(f'ds_read_b64_tr_b16 {ar(aO(n2,b)+u*4+mm*2,2)}, v{t[3]} offset:{off}')
                a('s_waitcnt lgkmcnt(8)')
    stage_qkv(0, 0); stage_qkv(1, 1)
    x3 = 3*16384
    if flat: a(f's_mov_b32 s{sT[4]}, {OFF_D}')
    else: a(f's_mul_i32 s{sT[4]}, s{sX}, {x3}\ns_add_u32 s{sT[4]}, s{sT[4]}, {OFF_D}')
    a(f's_lshl_b32 s{sT[5]}, s{sW}, 12\ns_add_u32 s{sT[5]}, s{sT[5]}, s{sT[4]}\nv_lshlrev_b32 v{t[4]}, 4, v{vL}\nv_add_u32 v{vDrd}, s{sT[5]}, v{t[4]}')
    if flat: a(f's_lshl_b32 s{sT[6]}, s{sX}, 5\ns_add_u32 s{sT[6]}, s{sT[6]}, s{sSlot}')
    else: a(f's_lshl_b32 s{sT[6]}, s{sSlot}, 2\ns_add_u32 s{sT[6]}, s{sT[6]}, s{sW}')
    a(f's_lshl_b32 s{sT[5]}, s{sT[6]}, 7\ns_add_u32 s{sT[5]}, s{sT[5]}, s{sT[4]}')
    a(f'v_lshlrev_b32 v{t[5]}, 4, v{vI}\nv_lshl_add_u32 v{t[5]}, v{vG}, 3, v{t[5]}\nv_add_u32 v{vDwr}, s{sT[5]}, v{t[5]}')
    a(f'v_mov_b32 v{t[7]}, {OOB}')
    a(f'v_and_b32 v{t[6]}, 0x28, v{vL}\nv_cmp_eq_u32 vcc, 0, v{t[6]}\ns_nop 1\nv_cndmask_b32 v{vDwr}, v{t[7]}, v{vDwr}, vcc')
    if flat:
        lf = a.newlab(name+'_p')
        a(f's_cmp_eq_u32 s{sW}, 0\ns_cbranch_scc1 {lf}\nv_mov_b32 v{vDwr}, {OOB}'); a.lab(lf)
    def bcmap(dst, src):
        a(f'v_lshrrev_b32 v{t[6]}, 13, v{src}\nv_lshlrev_b32 v{t[6]}, 14, v{t[6]}\nv_and_b32 v{dst}, 8191, v{src}\nv_add_u32 v{dst}, v{dst}, v{t[6]}')
        a(f's_lshl_b32 s{sT[7]}, s{sPar}, 13\ns_add_u32 s{sT[7]}, s{sT[7]}, {OFF_BC}\nv_add_u32 v{dst}, s{sT[7]}, v{dst}')
    if hier:
        a(f's_mul_i32 s{sT[8]}, s{sX}, {3*131072}\ns_add_u32 s{sT[8]}, s{sT[8]}, {OFF_B}\ns_lshl_b32 s{sT[5]}, s{sT[6]}, 10\ns_add_u32 s{sT[9]}, s{sT[5]}, s{sT[8]}\nv_add_u32 v{vBCrd}, s{sT[9]}, v{t[4]}')
        a(f'v_and_b32 v{t[5]}, 1, v{vG}\nv_lshl_add_u32 v{t[5]}, v{t[5]}, 3, v{vI}\nv_lshlrev_b32 v{t[5]}, 4, v{t[5]}\nv_add_u32 v{t[5]}, s{sT[5]}, v{t[5]}')
        a(f'v_lshl_add_u32 v{vCrd}, v{vHB}, 8, v{t[5]}\ns_lshl_b32 s{sT[9]}, s{sX}, 8\nv_add_u32 v{vCwr}, s{sT[9]}, v{t[5]}')
        bcmap(vCrd, vCrd); bcmap(vCwr, vCwr)
        a(f'v_cndmask_b32 v{vCwr}, v{t[7]}, v{vCwr}, vcc')
        a(f'v_lshl_add_u32 v{t[5]}, v{vG}, 1, v{vHB}\ns_lshl_b32 s{sT[5]}, s{sC}, 5\ns_lshl_b32 s{sT[7]}, s{sW}, 3\ns_add_u32 s{sT[5]}, s{sT[5]}, s{sT[7]}\nv_add_u32 v{t[5]}, s{sT[5]}, v{t[5]}')
        a(f'v_lshlrev_b32 v{t[5]}, 10, v{t[5]}\nv_lshl_add_u32 v{t[5]}, v{vI}, 4, v{t[5]}\ns_and_b32 s{sT[5]}, s{sH}, 7\ns_lshl_b32 s{sT[5]}, s{sT[5]}, 7\ns_add_u32 s{sT[5]}, s{sT[5]}, s{sT[8]}\nv_add_u32 v{vBCwr}, s{sT[5]}, v{t[5]}')
    else:
        a(f's_lshl_b32 s{sT[5]}, s{sT[6]}, 12\nv_add_u32 v{t[5]}, s{sT[5]}, v{t[4]}')
        bcmap(vBCrd, t[5])
        a(f'v_lshl_add_u32 v{t[5]}, v{vG}, 1, v{vHB}\ns_lshl_b32 s{sT[5]}, s{sC}, 5\ns_lshl_b32 s{sT[7]}, s{sW}, 3\ns_add_u32 s{sT[5]}, s{sT[5]}, s{sT[7]}\nv_add_u32 v{t[5]}, s{sT[5]}, v{t[5]}')
        a(f'v_lshlrev_b32 v{t[5]}, 12, v{t[5]}\nv_lshl_add_u32 v{t[5]}, v{vI}, 4, v{t[5]}\ns_lshl_b32 s{sT[5]}, s{sH}, 7\nv_add_u32 v{t[5]}, s{sT[5]}, v{t[5]}')
        bcmap(vBCwr, t[5])
    a(f's_lshl_b32 s{sT[5]}, s{sH}, 13\ns_add_u32 s{sT[5]}, s{sT[5]}, {OFF_A}\ns_lshl_b32 s{sT[7]}, s{sC}, 11\ns_add_u32 s{sT[7]}, s{sT[7]}, s{sT[5]}')
    a(f'v_add_u32 v{vAsr}, s{sT[5]}, v{t[4]}\nv_add_u32 v{vAsw}, s{sT[7]}, v{t[4]}')
    a(f'v_and_b32 v{t[5]}, 1, v{vG}\nv_lshl_add_u32 v{t[5]}, v{t[5]}, 3, v{vI}\nv_lshlrev_b32 v{t[5]}, 4, v{t[5]}\nv_add_u32 v{t[5]}, 1024, v{t[5]}')
    a(f'v_lshl_add_u32 v{vAmr}, v{vHB}, 11, v{t[5]}\nv_add_u32 v{vAmr}, s{sT[5]}, v{vAmr}')
    a(f'v_add_u32 v{vAmw}, s{sT[7]}, v{t[5]}\nv_and_b32 v{t[6]}, 0x28, v{vL}\nv_cmp_eq_u32 vcc, 0x20, v{t[6]}\ns_nop 1\nv_cndmask_b32 v{vAmw}, v{t[7]}, v{vAmw}, vcc')
    a(f'v_and_b32 v{t[5]}, 1, v{vG}\nv_lshl_add_u32 v{t[5]}, v{t[5]}, 1, v{vHB}\nv_lshlrev_b32 v{t[5]}, 4, v{t[5]}\nv_lshl_add_u32 v{t[5]}, v{vI}, 6, v{t[5]}')
    a(f'v_lshrrev_b32 v{t[6]}, 1, v{vG}\nv_lshl_add_u32 v{t[5]}, v{t[6]}, 11, v{t[5]}\nv_add_u32 v{t[5]}, 1536, v{t[5]}\nv_add_u32 v{vAvr}, s{sT[5]}, v{t[5]}')
    a(f'v_lshlrev_b32 v{t[5]}, 4, v{vG}\nv_lshl_add_u32 v{t[5]}, v{vI}, 6, v{t[5]}')
    a(f'v_add_u32 v{vAvw}, 1536, v{t[5]}\nv_add_u32 v{vAvw}, s{sT[7]}, v{vAvw}\nv_cmp_eq_u32 vcc, 0, v{vHB}\ns_nop 1\nv_cndmask_b32 v{vAvw}, v{t[7]}, v{vAvw}, vcc')
    a(f's_lshl_b32 s{sT[8]}, s{sH}, 2\ns_add_u32 s{sT[8]}, s{sT[8]}, s{sC}\ns_lshl_b32 s{sT[9]}, s{sT[8]}, 15')
    a(f's_add_u32 s{sT[10]}, s{sT[9]}, {OFF_VM}\nv_add_u32 v{vVMw}, s{sT[10]}, v{t[5]}\nv_cndmask_b32 v{vVMw}, v{t[7]}, v{vVMw}, vcc')
    a(f's_add_u32 s{sT[10]}, s{sT[9]}, {OFF_KM}\nv_add_u32 v{vKMw}, s{sT[10]}, v{t[5]}\nv_cndmask_b32 v{vKMw}, v{vKMw}, v{t[7]}, vcc')
    a(f'v_and_b32 v{t[5]}, 15, v{vL}\nv_lshlrev_b32 v{t[5]}, 6, v{t[5]}\nv_lshl_add_u32 v{t[5]}, v{vG}, 4, v{t[5]}')
    a(f's_lshl_b32 s{sT[9]}, s{sT[8]}, 17\ns_add_u32 s{sT[9]}, s{sT[9]}, {OFF_K}\nv_add_u32 v{vKt}, s{sT[9]}, v{t[5]}')
    a(f's_lshl_b32 s{sT[9]}, s{sH}, 19\ns_add_u32 s{sT[9]}, s{sT[9]}, {OFF_V}\nv_add_u32 v{vVt}, s{sT[9]}, v{t[5]}')
    a(f's_mul_i32 s{sT[9]}, s{sW}, {WSTR}\nv_and_b32 v{t[5]}, 1, v{vG}\nv_mul_u32_u24 v{t[5]}, {4*RS}, v{t[5]}\nv_lshrrev_b32 v{t[6]}, 1, v{vG}\nv_lshl_add_u32 v{t[5]}, v{t[6]}, 6, v{t[5]}\nv_add_u32 v{t[5]}, s{sT[9]}, v{t[5]}')
    a(f'v_and_b32 v{t[6]}, 15, v{vL}\nv_lshl_add_u32 v{vLw}, v{t[6]}, 2, v{t[5]}')
    a(f'v_add_u32 v{vLwk}, {MS}, v{vLw}')
    vLwv = vSt
    a(f'v_bfe_u32 v{t[6]}, v{vL}, 1, 1\nv_lshlrev_b32 v{t[6]}, 3, v{t[6]}\nv_bfe_u32 v{t[4]}, v{vL}, 2, 2\nv_lshl_add_u32 v{t[6]}, v{t[4]}, 1, v{t[6]}\nv_and_b32 v{t[4]}, 1, v{vL}\nv_add_u32 v{t[6]}, v{t[6]}, v{t[4]}')
    a(f'v_lshl_add_u32 v{vLwv}, v{t[6]}, 2, v{t[5]}\nv_add_u32 v{vLwv}, {2*MS}, v{vLwv}')
    a(f'v_mul_u32_u24 v{t[5]}, {RS}, v{vI}\nv_lshl_add_u32 v{t[6]}, v{vG}, 5, v{t[5]}')
    a(f'v_mul_u32_u24 v{t[4]}, {MS}, v{vHB}\nv_add_u32 v{vLr}, v{t[6]}, v{t[4]}')
    l1 = a.newlab(name+'_p'); l2 = a.newlab(name+'_p')
    a(f's_cmp_eq_u32 s{sW}, 0\ns_cbranch_scc1 {l1}')
    a(f'v_mul_u32_u24 v{t[4]}, {WSTR}, v{vHB}\nv_add_u32 v{t[4]}, {2*MS}, v{t[4]}\nv_add_u32 v{vLr}, v{t[6]}, v{t[4]}')
    a(f's_cmp_eq_u32 s{sW}, 1\ns_cbranch_scc1 {l1}')
    a(f'v_lshrrev_b32 v{t[6]}, 1, v{vG}\nv_lshl_add_u32 v{t[5]}, v{t[6]}, 6, v{t[5]}\nv_and_b32 v{t[6]}, 1, v{vG}\nv_lshl_add_u32 v{t[5]}, v{t[6]}, 4, v{t[5]}\nv_add_u32 v{vLr}, v{t[5]}, v{t[4]}')
    a.lab(l1)
    a(f'v_lshlrev_b32 v{vPw}, 4, v{vL}\nv_add_u32 v{vPw}, {LDS_P}, v{vPw}\nv_xor_b32 v{t[4]}, 128, v{vPw}\nv_add_u32 v{t[5]}, 8, v{vPw}\nv_mov_b32 v{t[6]}, {LDS_Z}')
    a(f'v_cmp_eq_u32 vcc, 0, v{vHB}\ns_nop 1')
    a(f'v_cndmask_b32 v{vPr[0]}, v{t[6]}, v{vPw}, vcc\nv_cndmask_b32 v{vPr[1]}, v{t[6]}, v{t[4]}, vcc\nv_cndmask_b32 v{vPr[2]}, v{t[6]}, v{t[5]}, vcc')
    a(f'v_cndmask_b32 v{vPr[3]}, v{t[4]}, v{t[6]}, vcc\nv_cndmask_b32 v{vPr[4]}, v{vPw}, v{t[6]}, vcc\nv_cndmask_b32 v{vPr[5]}, v{t[5]}, v{t[6]}, vcc')
    a(f'v_mov_b32 v{t[4]}, 0xeeee\nv_mov_b32 v{t[5]}, 0x4444\nv_cndmask_b32 v{vIdx}, v{t[4]}, v{t[5]}, vcc')
    a(f'v_and_b32 v{t[4]}, 1, v{vI}\nv_lshlrev_b32 v{t[4]}, 4, v{t[4]}\nv_mov_b32 v{t[5]}, 0x3f80\nv_lshlrev_b32 v{t[5]}, v{t[4]}, v{t[5]}\nv_lshrrev_b32 v{t[4]}, 1, v{vI}')
    for u in range(4):
        a(f'v_cmp_eq_u32 vcc, {u}, v{t[4]}\nv_mov_b32 v{vOneT+u}, 0x3f803f80\nv_mov_b32 v{vSent+u}, -1\nv_cndmask_b32 v{vSel+u}, 0, v{t[5]}, vcc')
    a(f'v_cmp_gt_u32 vcc, 2, v{vG}\nv_mov_b32 v{vOneM+2}, 0\nv_mov_b32 v{vOneM+3}, 0\nv_cndmask_b32 v{vOneM}, 0, v{vOneT}, vcc\nv_cndmask_b32 v{vOneM+1}, 0, v{vOneT}, vcc')
    for r in (vBlo+6, vBlo+7, vBhi+6, vBhi+7): a(f'v_mov_b32 v{r}, 0')
    for b in range(4): a(f'v_mov_b32 v{vWm+4*b+2}, 0\nv_mov_b32 v{vWm+4*b+3}, 0')
    import struct, math
    cl = struct.unpack('<I', struct.pack('<f', (128**-0.5)*math.log2(math.e)))[0]
    a(f's_mov_b32 s{sCl}, {cl:#x}\ns_mov_b32 s{sTO}, {1<<22}')
    a('s_waitcnt vmcnt(16)'); read_qkv(0, 0)
    a('s_waitcnt vmcnt(0)'); read_qkv(1, 1)
    a('s_waitcnt lgkmcnt(0)')
    stage_qkv(2, 0); stage_o(1)
    a('s_waitcnt vmcnt(16)'); read_qkv(2, 0)
    a('s_waitcnt vmcnt(0)'); read_o(1)
    a('s_waitcnt lgkmcnt(0)\ns_barrier')
    a(f'v_mov_b32 v{t[4]}, 0\nv_mov_b32 v{t[5]}, 0\nv_mov_b32 v{t[6]}, {LDS_Z}\nds_write_b64 v{t[6]}, v[{t[4]}:{t[5]}]' if t[4] % 2 == 0 else
      f'v_mov_b32 v{t[4]}, 0\nv_mov_b32 v{t[6]}, {LDS_Z}\nds_write_b32 v{t[6]}, v{t[4]}\nds_write_b32 v{t[6]}, v{t[4]} offset:4')
    a(f's_mov_b32 s{sD[0]}, 0\ns_mov_b32 s{sD[1]}, 16384\ns_mov_b32 s{sD[2]}, 32768')
    a(f's_mov_b32 s{sA[0]}, 0\ns_mov_b32 s{sA[1]}, {32*8192}\ns_mov_b32 s{sA[2]}, {64*8192}')
    a(f's_mov_b32 s{sBC[0]}, 0\ns_mov_b32 s{sBC[1]}, {MBY}\ns_lshl_b32 s{sT[0]}, s{sPar}, 14\ns_sub_u32 s{sBC[2]}, {2*MBY+8192}, s{sT[0]}')
    if hier:
        a(f's_mov_b32 s{sBC[0]}, 0\ns_mov_b32 s{sBC[1]}, 131072\ns_mov_b32 s{sBC[2]}, 262144')
        a(f's_mov_b32 s{sCr[0]}, 0\ns_mov_b32 s{sCr[1]}, 262144\ns_mov_b32 s{sCr[2]}, 524288')
    a(f's_mov_b32 s{sStep}, 0\ns_mov_b32 s{sKM}, 0')
    WSD = f's[{SRD_WS}:{SRD_WS+3}]'
    a(f'v_lshlrev_b32 v{vTr}, 4, v{vL}\nv_add_u32 v{vTr}, {LDS_TOK}, v{vTr}')
    def dma_tok(part):
        L = []
        for cc in range(4):
            L.append(f's_add_u32 m0, s{sTok}, {LDS_TOK + (part*4+cc)*1024}\ns_add_u32 s{sVt4[0]}, s{sVt}, {cc*M*64 + part*1024}\n'
                     f'buffer_load_dwordx4 v{vVt}, {WSD}, s{sVt4[0]} offen lds')
        L.append(f's_add_u32 m0, s{sTok}, {LDS_TOK + (8+part)*1024}\ns_add_u32 s{sVt4[0]}, s{sVt}, {part*1024}\n'
                 f'buffer_load_dwordx4 v{vKt}, {WSD}, s{sVt4[0]} offen lds')
        return L
    def read_tok():
        a(f'v_add_u32 v{t[7]}, s{sTok}, v{vTr}')
        for f in range(8): a(f'ds_read_b128 {vr(vVtf+f*4,4)}, v{t[7]} offset:{f*1024}')
        for f in range(2): a(f'ds_read_b128 {vr(vKtf+f*4,4)}, v{t[7]} offset:{(8+f)*1024}')
    def vw_tok_list():
        L = []
        for b in range(4):
            for tb in range(2):
                for cc in range(4):
                    D = vr(accT+(b*2+tb)*4,4)
                    L.append(f'v_mfma_f32_16x16x32_bf16 {D}, {vr(vVtf+(tb*4+cc)*4,4)}, {ar(aO(cc>>1,b)+(cc&1)*4,4)}, {D if cc else 0}')
            if b:
                L[-1] += ''.join(f'\nv_cvt_pk_bf16_f32 v{vWt+(b-1)*4+tb*2+k}, v{accT+((b-1)*2+tb)*4+2*k}, v{accT+((b-1)*2+tb)*4+2*k+1}' for tb in range(2) for k in range(2))
        return L
    def vw_tok_fin():
        for tb in range(2):
            for k in range(2): a(f'v_cvt_pk_bf16_f32 v{vWt+12+tb*2+k}, v{accT+(6+tb)*4+2*k}, v{accT+(6+tb)*4+2*k+1}')
    def zero_acc():
        for r in range(24): a(f'v_mov_b32 v{acc+r}, 0')
        for r in range(16): a(f'v_mov_b32 v{accW+r}, 0')
    def fail_check(k=0):
        if stamps: a(f's_add_u32 s{68+k}, s{68+k}, 1')
        a(f's_sub_u32 s{sTO}, s{sTO}, 1\ns_cbranch_scc1 {END}')
    def chk4(r0, tt):
        return [f'v_max3_u32 v{tt}, v{r0}, v{r0+1}, v{r0+2}', f'v_max_u32 v{tt}, v{tt}, v{r0+3}', f'v_cmp_eq_u32 vcc, -1, v{tt}']
    a(f's_mov_b32 s{sVt}, 0\ns_mov_b32 s{sTok}, 0')
    lq = a.newlab(name+'_p')
    a(f's_cmp_lg_u32 s{sW}, 0\ns_cbranch_scc1 {lq}')
    for x in dma_tok(0) + dma_tok(1): a(x)
    a(f's_mov_b32 s{sVt}, 2048\ns_mov_b32 s{sTok}, 10240')
    for x in dma_tok(0) + dma_tok(1): a(x)
    a(f's_mov_b32 s{sTok}, 0')
    a.lab(lq)
    a(f's_load_dwordx2 s[{SRD_IN}:{SRD_IN+1}], s[0:1], 8\ns_mov_b32 s{SRD_IN+2}, 16384')
    a(f'v_lshlrev_b32 v{t[4]}, 11, v{vI}\nv_and_b32 v{t[5]}, 1, v{vG}\nv_lshl_add_u32 v{t[4]}, v{t[5]}, 3, v{t[4]}\ns_lshl_b32 s{sT[0]}, s{sT[6]}, 4\nv_add_u32 v{t[4]}, s{sT[0]}, v{t[4]}')
    a(f's_waitcnt lgkmcnt(0)\nbuffer_load_dwordx2 {vr(vRo,2)}, v{t[4]}, s[{SRD_IN}:{SRD_IN+3}], 0 offen')
    a('s_waitcnt vmcnt(0)\ns_barrier')
    a(f'buffer_store_dwordx2 {vr(vRo,2)}, v{vDwr}, {WSD}, s{sD[0]} offen{DS}')
    read_tok(); a('s_waitcnt lgkmcnt(0)')
    for x in vw_tok_list(): a(x)
    a('s_nop 7'); vw_tok_fin()
    a(f's_mov_b32 s{sVt}, 4096\ns_mov_b32 s{sTok}, 10240')
    zero_acc()

    LOOP = name+'_loop'
    a('.p2align 6'); a.lab(LOOP)
    stamp(0)
    if stamps: a('s_mov_b32 s68, 0\ns_mov_b32 s69, 0\ns_mov_b32 s70, 0\ns_mov_b32 s71, 0')
    dload = lambda k: f'buffer_load_dwordx4 {vr(vMem+4*k,4)}, v{vDrd}, {WSD}, s{sD[0]} offen offset:{k*1024} sc1'
    for k in range(4): a(dload(k))
    def sm(blk, ks):
        mat, eb = blk >> 1, blk & 1
        return f'v_smfmac_f32_16x16x64_bf16 {vr(acc+4*blk,4)}, {vr(vMem+4*ks,4)}, {ar(aW(mat,ks,eb),8)}, v{vIdx}'
    for k in range(4):
        a.lab(f'{name}_dp{k}')
        a(f's_waitcnt vmcnt({3-k})')
        for x in chk4(vMem+4*k, t[0]): a(x)
        a(f's_cbranch_vccnz {name}_dr{k}')
        if k == 3: stamp(1)
        stamp(1+k, 2)
        for b in range(4): a(sm(b, k))
    vs = [sm(4+eb, ks) for ks in range(4) for eb in range(2)]
    def halfadd(p, r): return f'v_permlane32_swap_b32 v{acc+8*p+r}, v{acc+8*p+4+r}\nv_add_f32 v{acc+8*p+r}, v{acc+8*p+r}, v{acc+8*p+4+r}'
    def wr2(p, r, addr, base): return f'ds_write2_b32 v{addr}, v{acc+8*p+r}, v{acc+8*p+r+1} offset0:{(base+r*RS)//4} offset1:{(base+(r+1)*RS)//4}'
    a(vs[0]); a(f'buffer_store_dwordx2 {vr(vSent,2)}, v{vDwr}, {WSD}, s{sD[2]} offen{DS}'); a(vs[1])
    if hier: a(f'buffer_store_dwordx4 {vr(vSent,4)}, v{vCwr}, {WSD}, s{sCr[1]} offen sc1')
    a(vs[2])
    if hier: a(f'buffer_store_dwordx4 {vr(vSent,4)}, v{vBCwr}, {WSD}, s{sBC[1]} offen{LS}')
    a(vs[3])
    if not hier: a('s_nop 0')
    stamp(5, 2)
    a(halfadd(0,0)); a(vs[4]); a(halfadd(0,1)); a(wr2(0,0,vLw,0)); a(vs[5]); a(halfadd(0,2)); a(halfadd(0,3)); a(vs[6]); a(wr2(0,2,vLw,0))
    a(vs[7]); a(halfadd(1,0)); a(halfadd(1,1)); a(wr2(1,0,vLwk,0)); a(halfadd(1,2)); a(halfadd(1,3)); a(wr2(1,2,vLwk,0))
    a(halfadd(2,0)); a(halfadd(2,1)); a(wr2(2,0,vLwv,0)); a(halfadd(2,2)); a(halfadd(2,3)); a(wr2(2,2,vLwv,0))
    stamp(6, 2)
    a('s_waitcnt lgkmcnt(0)\ns_barrier')
    stamp(7, 2)
    stamp(2); stamp(1, 1)
    W1, W2, W3, VP = name+'_w1', name+'_w2', name+'_w3', name+'_vp'
    rearm_bc = lambda so: f'buffer_store_dwordx4 {vr(vSent,4)}, v{vBCwr}, {WSD}, s{so} offen sc1'
    a(f's_add_u32 s{sA2}, s{sA[0]}, 4096')
    a(f's_cmp_eq_u32 s{sW}, 0\ns_cbranch_scc0 {W1}')
    for wv in range(4):
        for k in range(2): a(f'ds_read_b128 {vr(vX+(wv*2+k)*4,4)}, v{vLr} offset:{wv*WSTR+k*16}')
    a('s_waitcnt lgkmcnt(4)')
    for r in range(8): a(f'v_add_f32 v{vX+r}, v{vX+r}, v{vX+8+r}')
    a('s_waitcnt lgkmcnt(2)')
    for r in range(8): a(f'v_add_f32 v{vX+r}, v{vX+r}, v{vX+16+r}')
    a('s_waitcnt lgkmcnt(0)')
    for r in range(0, 8, 2):
        a(f'v_add_f32 v{vX+r}, v{vX+r}, v{vX+24+r}\nv_add_f32 v{vX+r+1}, v{vX+r+1}, v{vX+25+r}\nv_cvt_pk_bf16_f32 v{vXo+r//2}, v{vX+r}, v{vX+r+1}')
    a('s_nop 1')
    a(f'v_mfma_f32_16x16x32_bf16 {vr(vS+4,4)}, {vr(vKtf+4,4)}, {vr(vXo,4)}, 0')
    a(f'v_mfma_f32_16x16x32_bf16 {vr(vS,4)}, {vr(vKtf,4)}, {vr(vXo,4)}, 0')
    a(f'v_mfma_f32_16x16x32_bf16 {vr(vS+8,4)}, {vr(vXo,4)}, {vr(vXo,4)}, 0')
    a('s_nop 6')
    for r in range(4): a(f'v_mov_b32_dpp v{vS+r}, v{vS+4+r} row_ror:8 row_mask:0xf bank_mask:0xc')
    a(f'buffer_store_dwordx4 {vr(vS,4)}, v{vAsw}, {WSD}, s{sA[0]} offen{LS}')
    a(f'buffer_store_dwordx4 {vr(vS+8,4)}, v{vAmw}, {WSD}, s{sA[0]} offen{LS}')
    stamp(2, 1)
    a(f'buffer_store_dwordx4 {vr(vSent,4)}, v{vAsw}, {WSD}, s{sA[2]} offen{LS}\nbuffer_store_dwordx4 {vr(vSent,4)}, v{vAmw}, {WSD}, s{sA[2]} offen{LS}')
    a(f's_branch {VP}')
    a.lab(W1)
    a(f's_cmp_eq_u32 s{sW}, 3\ns_cbranch_scc1 {W3}')
    a(f's_cmp_eq_u32 s{sW}, 2\ns_cbranch_scc1 {W2}')
    for wv in range(2):
        for k in range(2): a(f'ds_read_b128 {vr(vX+(wv*2+k)*4,4)}, v{vLr} offset:{wv*2*WSTR+k*16}')
    def vsum():
        a('s_waitcnt lgkmcnt(0)')
        for r in range(8): a(f'v_add_f32 v{vX+r}, v{vX+r}, v{vX+8+r}')
        for r in range(8): a(f'v_add_f32_dpp v{vX+8+r}, v{vX+r}, v{vX+r} row_ror:8 row_mask:0xf bank_mask:0xf')
        for r in range(4): a(f'v_cvt_pk_bf16_f32 v{vXo+r}, v{vX+8+2*r}, v{vX+9+2*r}')
    vsum()
    a(f'buffer_store_dwordx4 {vr(vXo,4)}, v{vAvw}, {WSD}, s{sA[0]} offen{LS}')
    stamp(2, 1)
    a(f'buffer_store_dwordx4 {vr(vSent,4)}, v{vAvw}, {WSD}, s{sA[2]} offen{LS}')
    a(f's_branch {VP}')
    a.lab(W2)
    for wv in range(2):
        for k in range(4):
            a(f'ds_read_b64 {vr(vX+wv*8+2*k,2)}, v{vLr} offset:{wv*2*WSTR+(k&1)*32+(k>>1)*8}')
    a(f'v_subrev_u32 v{t[6]}, 131072, v{vBCwr}')
    for wv in range(0 if hier else 4):
        a(f's_add_u32 s{sBC3}, s{sBC[1]}, {wv*65536}\nbuffer_store_dwordx4 {vr(vSent,4)}, v{t[6]}, {WSD}, s{sBC3} offen sc1')
    vsum()
    a.lab(VP)
    LAST = name+'_last'
    a(f's_cmp_eq_u32 s{sStep}, {nsteps}\ns_cbranch_scc1 {LAST}')
    vloads = f'buffer_load_dwordx4 {vr(vVm,4)}, v{vAvr}, {WSD}, s{sA[0]} offen sc1\nbuffer_load_dwordx4 {vr(vVm+4,4)}, v{vAvr}, {WSD}, s{sA2} offen sc1'
    vchk = f'v_max3_u32 v{t[0]}, v{vVm}, v{vVm+1}, v{vVm+2}\nv_max3_u32 v{t[1]}, v{vVm+3}, v{vVm+4}, v{vVm+5}\nv_max3_u32 v{t[0]}, v{t[0]}, v{vVm+6}, v{vVm+7}\nv_max_u32 v{t[0]}, v{t[0]}, v{t[1]}\nv_cmp_eq_u32 vcc, -1, v{t[0]}'
    vwm = [f'v_smfmac_f32_16x16x64_bf16 {vr(accW+4*b,4)}, {vr(vVm+4*n2,4)}, {ar(aO(n2,b),8)}, v{vIdx}' for n2 in range(2) for b in range(4)]
    vwc = [f'v_cvt_pk_bf16_f32 v{vWm+4*b+k}, v{accW+4*b+2*k}, v{accW+4*b+2*k+1}' for b in range(4) for k in range(2)]
    a(f's_barrier\nds_read_b128 {vr(vVm,4)}, v{vPw} offset:{LDS_V-LDS_P}\nds_read_b128 {vr(vVm+4,4)}, v{vPw} offset:{LDS_V-LDS_P+1024}\ns_waitcnt lgkmcnt(0)')
    for x in vwm: a(x)
    a('s_nop 4')
    for x in vwc: a(x)
    B2 = name+'_b2'
    a(f's_branch {B2}')
    a.lab(W3)
    a(f's_cmp_eq_u32 s{sStep}, {nsteps}\ns_cbranch_scc1 {END}')
    sloads = (f'buffer_load_dwordx4 {vr(vX,4)}, v{vAsr}, {WSD}, s{sA[0]} offen sc1\nbuffer_load_dwordx4 {vr(vX+4,4)}, v{vAsr}, {WSD}, s{sA[0]} offen offset:2048 sc1\n'
              f'buffer_load_dwordx4 {vr(vX+8,4)}, v{vAsr}, {WSD}, s{sA2} offen sc1\nbuffer_load_dwordx4 {vr(vX+12,4)}, v{vAsr}, {WSD}, s{sA2} offen offset:2048 sc1\n'
              f'buffer_load_dwordx4 {vr(vX+16,4)}, v{vAmr}, {WSD}, s{sA[0]} offen sc1\nbuffer_load_dwordx4 {vr(vX+20,4)}, v{vAmr}, {WSD}, s{sA2} offen sc1')
    def schk():
        for k in range(4): a(f'v_max3_u32 v{t[k]}, v{vX+6*k}, v{vX+6*k+1}, v{vX+6*k+2}')
        for k in range(4): a(f'v_max3_u32 v{t[k]}, v{t[k]}, v{vX+6*k+3}, v{vX+6*k+4}')
        a(f'v_max3_u32 v{t[0]}, v{t[0]}, v{vX+5}, v{vX+11}\nv_max3_u32 v{t[1]}, v{t[1]}, v{vX+17}, v{vX+23}\nv_max3_u32 v{t[0]}, v{t[0]}, v{t[2]}, v{t[3]}\nv_max_u32 v{t[0]}, v{t[0]}, v{t[1]}\nv_cmp_eq_u32 vcc, -1, v{t[0]}')
    def softmax(with_vw):
        L = []
        for r in range(4): L.append(f'v_add_f32 v{vX+16+r}, v{vX+16+r}, v{vX+20+r}')
        for r in range(4): L += [f'v_add_f32 v{vX+r}, v{vX+r}, v{vX+4+r}', f'v_add_f32 v{vX+8+r}, v{vX+8+r}, v{vX+12+r}']
        for r in range(4): L.append(f'v_add_f32_dpp v{vX+4+r}, v{vX+16+r}, v{vX+16+r} row_ror:8 row_mask:0xf bank_mask:0xf')
        for r in range(4): L.append(f'v_add_f32 v{vX+r}, v{vX+r}, v{vX+8+r}')
        L += [f'v_max3_f32 v{t[0]}, v{vX+4}, v{vX+5}, v{vX+6}', f'v_max3_f32 v{t[0]}, v{t[0]}, v{vX+7}, v{vX}', f'v_max3_f32 v{t[0]}, v{t[0]}, v{vX+1}, v{vX+2}', f'v_max_f32 v{t[0]}, v{t[0]}, v{vX+3}']
        if with_vw:
            for k, x in enumerate(L):
                if k % 3 == 0 and k//3 < 8: a(vwm[k//3])
                a(x)
        else:
            for x in L: a(x)
        pad = lambda k: a(vwc[2*k] + '\n' + vwc[2*k+1]) if with_vw else a('s_nop 1')
        a('s_nop 1')
        a(f'v_max_f32_dpp v{t[0]}, v{t[0]}, v{t[0]} row_ror:8 row_mask:0xf bank_mask:0xf')
        a(f'v_mov_b32 v{t[1]}, v{t[0]}'); pad(0); a(f'v_permlane16_swap_b32 v{t[0]}, v{t[1]}\nv_max_f32 v{t[0]}, v{t[0]}, v{t[1]}')
        a(f'v_mov_b32 v{t[1]}, v{t[0]}'); pad(1); a(f'v_permlane32_swap_b32 v{t[0]}, v{t[1]}\nv_max_f32 v{t[0]}, v{t[0]}, v{t[1]}')
        a(f'v_mul_f32 v{t[0]}, s{sCl}, v{t[0]}')
        for r in range(8): a(f'v_fma_f32 v{vX+r}, v{vX+r}, s{sCl}, -v{t[0]}')
        for r in range(8): a(f'v_exp_f32 v{vX+r}, v{vX+r}')
        a('s_nop 0')
        for r in range(4): a(f'v_cvt_pk_bf16_f32 v{vXo+r}, v{vX+2*r}, v{vX+2*r+1}')
        a(f'ds_write_b128 v{vPw}, {vr(vXo,4)}')
        if with_vw:
            for x in vwc[4:]: a(x)
        a('s_waitcnt lgkmcnt(0)')
    W3c, W3d, W3v = [name+'_w3'+x for x in 'cdv']
    vsets = [vVtf+8*k for k in range(nv)]
    vld = lambda R: f'buffer_load_dwordx4 {vr(R,4)}, v{vAvr}, {WSD}, s{sA[0]} offen sc1\nbuffer_load_dwordx4 {vr(R+4,4)}, v{vAvr}, {WSD}, s{sA2} offen sc1'
    for k in range(nv):
        a(vld(vsets[k]))
        if k < nv-1:
            for _ in range(vgap): a('s_nop 15')
    a.lab(name+'_w3p')
    for k in range(nv):
        R = vsets[k]
        a(f's_waitcnt vmcnt({2*(nv-1)})')
        a(f'v_max3_u32 v{t[0]}, v{R}, v{R+1}, v{R+2}\nv_max3_u32 v{t[1]}, v{R+3}, v{R+4}, v{R+5}\nv_max3_u32 v{t[0]}, v{t[0]}, v{R+6}, v{R+7}\nv_max_u32 v{t[0]}, v{t[0]}, v{t[1]}\nv_cmp_eq_u32 vcc, -1, v{t[0]}')
        a(f's_cbranch_vccz {name}_w3v{k}')
        a(vld(R)); fail_check(1)
    a(f's_branch {name}_w3p')
    for k in range(nv):
        R = vsets[k]
        a.lab(f'{name}_w3v{k}')
        stamp(2, 1)
        a(sloads)
        a(f'ds_write_b128 v{vPw}, {vr(R,4)} offset:{LDS_V-LDS_P}\nds_write_b128 v{vPw}, {vr(R+4,4)} offset:{LDS_V-LDS_P+1024}')
        for n2 in range(2):
            for b in range(4):
                a(f'v_smfmac_f32_16x16x64_bf16 {vr(accW+4*b,4)}, {vr(R+4*n2,4)}, {ar(aO(n2,b),8)}, v{vIdx}')
                if n2 == 0 and b == 3: a('s_waitcnt lgkmcnt(0)\ns_barrier')
        if k < nv-1: a(f's_branch {W3v}')
    a.lab(W3v)
    stamp(3, 1)
    a('s_nop 4')
    for x in vwc: a(x)
    a.lab(W3c)
    a('s_waitcnt vmcnt(0)'); stamp(4, 1); schk(); a(f's_cbranch_vccnz {W3d}')
    stamp(4); stamp(5, 1); softmax(False)
    a.lab(B2)
    stamp(6, 1)
    a('s_barrier')
    stamp(5); stamp(7, 1)
    a(f'ds_read_b64 {vr(vBlo,2)}, v{vPr[0]}\nds_read_b64 {vr(vBlo+2,2)}, v{vPr[1]}\nds_read_b64 {vr(vBlo+4,2)}, v{vPr[2]}')
    a(f'ds_read_b64 {vr(vBhi,2)}, v{vPr[3]}\nds_read_b64 {vr(vBhi+2,2)}, v{vPr[4]}\nds_read_b64 {vr(vBhi+4,2)}, v{vPr[5]}')
    mf = lambda D, A, B, C: a(f'v_mfma_f32_16x16x32_bf16 {vr(D,4)}, {vr(A,4)}, {vr(B,4)}, {vr(D,4) if C else 0}')
    a('s_waitcnt lgkmcnt(3)')
    mf(vLs, vOneT, vBlo, 0); mf(vLs, vOneM, vBlo+4, 1)
    mf(vF, vWt, vBlo, 0); mf(vF+4, vWt+4, vBlo, 0); mf(vF, vWm, vBlo+4, 1); mf(vF+4, vWm+4, vBlo+4, 1)
    a('s_waitcnt lgkmcnt(0)')
    mf(vF, vWt+8, vBhi, 1); mf(vF+4, vWt+12, vBhi, 1)
    a(f's_nop 0\nv_rcp_f32 v{t[0]}, v{vLs}')
    mf(vF, vWm+8, vBhi+4, 1); mf(vF+4, vWm+12, vBhi+4, 1)
    a(f's_nop 0\nv_mov_b32_dpp v{t[0]}, v{t[0]} row_ror:8 row_mask:0xf bank_mask:0xc')
    a('s_nop 4')
    for r in range(0, 8, 2):
        a(f'v_mul_f32 v{vF+r}, v{vF+r}, v{t[0]}\nv_mul_f32 v{vF+r+1}, v{vF+r+1}, v{t[0]}\nv_cvt_pk_bf16_f32 v{vOut+r//2}, v{vF+r}, v{vF+r+1}')
    a(f'buffer_store_dwordx4 {vr(vOut,4)}, v{vBCwr}, {WSD}, s{sBC[0]} offen' + (LS if hier else ' sc1'))
    stamp(6)
    if hier:
        bld = lambda k: f'buffer_load_dwordx4 {vr(vRd+4*k,4)}, v{vBCrd}, {WSD}, s{sBC[0]} offen sc1'
        zl = [f'v_mov_b32 v{acc+r}, 0' for r in range(24)] + [f'v_mov_b32 v{accW+r}, 0' for r in range(16)]
        for k in range(nb):
            if k == 0: read_tok()
            else:
                for x in zl[(k-1)*40//max(nb-1,1):k*40//max(nb-1,1)]: a(x)
            a(bld(k))
        if nb == 1:
            for x in zl: a(x)
        a.lab(name+'_hb')
        for k in range(nb):
            a(f's_waitcnt vmcnt({nb-1})')
            mf(vRa, vSel, vRd+4*k, 0)
            for x in chk4(vRd+4*k, t[0]): a(x)
            a(f's_cbranch_vccz {name}_hbd')
            a(bld(k)); fail_check(2)
        a(f's_branch {name}_hb')
        a.lab(name+'_hbd')
        a('s_nop 3')
        for r in range(4): a(f'v_add_f32_dpp v{vOut+r}, v{vRa+r}, v{vRa+r} row_ror:8 row_mask:0xf bank_mask:0xf')
        a(f'buffer_store_dwordx4 {vr(vOut,4)}, v{vCwr}, {WSD}, s{sCr[0]} offen sc1')
        stamp(3)
    def kmvm():
        l0 = a.newlab(name+'_n'); l2 = a.newlab(name+'_n')
        a(f's_cmp_eq_u32 s{sW}, 0\ns_cbranch_scc0 {l0}\nbuffer_store_dwordx4 {vr(vXo,4)}, v{vKMw}, {WSD}, s{sKM} offen sc1')
        a.lab(l0)
        a(f's_cmp_eq_u32 s{sW}, 2\ns_cbranch_scc0 {l2}\nbuffer_store_dwordx4 {vr(vXo,4)}, v{vVMw}, {WSD}, s{sKM} offen sc1')
        a.lab(l2)
    if not hier: read_tok(); zero_acc()
    a('s_waitcnt lgkmcnt(0)')
    a(f's_sub_u32 s{sTok}, 10240, s{sTok}')
    if 'v' not in abl:
        for part in range(2):
            lt = a.newlab(name+'_n')
            a(f's_cmp_eq_u32 s{sW}, {1+2*part}\ns_cbranch_scc0 {lt}')
            for x in dma_tok(part): a(x)
            a.lab(lt)
    if 'k' not in abl: kmvm()
    bload = lambda k: f'buffer_load_dwordx4 {vr(vRd+4*k,4)}, v{vBCrd}, {WSD}, s{sBC[0]} offen offset:{k*1024} sc1'
    BD = name+'_bd'
    VL = vw_tok_list()
    for x in VL[:bcpos]: a(x)
    for _ in range(bcnop): a('s_nop 15')
    if flat:
        lw = a.newlab(name+'_n')
        a(f's_cmp_lg_u32 s{sW}, 0\ns_cbranch_scc1 {lw}')
    cloads = f'buffer_load_dwordx4 {vr(vRd,4)}, v{vCrd}, {WSD}, s{sCr[0]} offen sc1\nbuffer_load_dwordx4 {vr(vRd+4,4)}, v{vCrd}, {WSD}, s{sCr[0]} offen offset:512 sc1'
    if hier: a(cloads)
    else:
        for k in range(4): a(bload(k))
    if flat: a.lab(lw)
    for x in VL[bcpos:]: a(x)
    a('s_nop 7'); vw_tok_fin()
    a(f's_add_u32 s{sVt}, s{sVt}, 2048')
    if flat: a(f's_cmp_lg_u32 s{sW}, 0\ns_cbranch_scc1 {BD}')
    if hier:
        a.lab(name+'_hc')
        a('s_waitcnt vmcnt(0)')
        a(f'v_max3_u32 v{t[0]}, v{vRd}, v{vRd+1}, v{vRd+2}\nv_max3_u32 v{t[1]}, v{vRd+3}, v{vRd+4}, v{vRd+5}\nv_max3_u32 v{t[0]}, v{t[0]}, v{vRd+6}, v{vRd+7}\nv_max_u32 v{t[0]}, v{t[0]}, v{t[1]}\nv_cmp_eq_u32 vcc, -1, v{t[0]}')
        for r in range(4): a(f'v_add_f32 v{vRa+r}, v{vRd+r}, v{vRd+4+r}')
        a(f's_cbranch_vccnz {name}_hcr')
        stamp(7)
    else:
        for k in range(4):
            a.lab(f'{name}_bp{k}')
            a(f's_waitcnt vmcnt({3-k})')
            for x in chk4(vRd+4*k, t[0]): a(x)
            a(f's_cbranch_vccnz {name}_br{k}')
            mf(vRa, vSel, vRd+4*k, k)
        stamp(7)
        a('s_nop 7')
    for r in range(4): a(f'v_add_f32_dpp v{vRd+r}, v{vRa+r}, v{vRa+r} row_ror:8 row_mask:0xf bank_mask:0xf')
    a(f'v_cvt_pk_bf16_f32 v{vRo}, v{vRd}, v{vRd+1}\nv_cvt_pk_bf16_f32 v{vRo+1}, v{vRd+2}, v{vRd+3}')
    a(f'buffer_store_dwordx2 {vr(vRo,2)}, v{vDwr}, {WSD}, s{sD[1]} offen{DS}')
    a.lab(BD)
    if stamps:
        a('s_waitcnt lgkmcnt(0)')
        for k in range(8): a(f'v_writelane_b32 v{t[2]}, s{sStamp+2*k}, {k}')
        a(f's_memrealtime s[72:73]\ns_waitcnt lgkmcnt(0)')
        for k in range(5): a(f'v_writelane_b32 v{t[2]}, s{68+k}, {8+k}')
        a(f's_lshl_b32 s{sT[0]}, s{sX}, 5\ns_add_u32 s{sT[0]}, s{sT[0]}, s{sSlot}\ns_lshl_b32 s{sT[0]}, s{sT[0]}, 2\ns_add_u32 s{sT[0]}, s{sT[0]}, s{sW}\ns_lshl_b32 s{sT[0]}, s{sT[0]}, 6\ns_add_u32 s{sT[0]}, s{sT[0]}, s{sStep}\ns_lshl_b32 s{sT[0]}, s{sT[0]}, 6\ns_add_u32 s{sT[0]}, s{sT[0]}, {OFF_STAMP}')
        a(f'v_lshlrev_b32 v{t[3]}, 2, v{vL}\nv_mov_b32 v{t[4]}, {OOB}\nv_cmp_gt_u32 vcc, 16, v{vL}\ns_nop 1\nv_cndmask_b32 v{t[3]}, v{t[4]}, v{t[3]}, vcc')
        a(f'buffer_store_dword v{t[2]}, v{t[3]}, {WSD}, s{sT[0]} offen')
    for s_ in (sD, sA, sBC) + ((sCr,) if hier else ()):
        a(f's_mov_b32 s{sT[0]}, s{s_[0]}\ns_mov_b32 s{s_[0]}, s{s_[1]}\ns_mov_b32 s{s_[1]}, s{s_[2]}\ns_mov_b32 s{s_[2]}, s{sT[0]}')
    a(f's_add_u32 s{sStep}, s{sStep}, 1\ns_add_u32 s{sKM}, s{sKM}, 512\ns_branch {LOOP}')
    for k in range(4):
        a.lab(f'{name}_dr{k}'); fail_check(0)
        for kk in range(k, 4): a(dload(kk))
        a(f's_branch {name}_dp{k}')
        if hier: continue
        a.lab(f'{name}_br{k}'); fail_check(3)
        for kk in range(k, 4): a(bload(kk))
        a(f's_branch {name}_bp{k}')
    if hier:
        a.lab(name+'_hcr'); fail_check(3); a(cloads); a(f's_branch {name}_hc')
    a.lab(W3d); fail_check(2); a(sloads); a(f's_branch {W3c}')
    a.lab(LAST); kmvm(); a(f's_branch {END}')
```

```python
from asmlib import *
from layout import *

class Gemm:
    SRD_WS, SRD_W, SRD_O = 8, 12, 16
    sXs, sWs, sCnt, sWstep = 20, 21, 22, 23
    sM0x, sM0w, sWv, sWn_, sWm_ = 26, 27, 28, 32, 33
    sXo, sWn, sLdb, sNK = 36, 37, 38, 39
    sT = [40, 41, 42, 43, 44, 45]
    def __init__(self, a, name, NB=4, MB=4, S=4):
        self.a, self.name, self.NB, self.MB, self.S = a, name, NB, MB, S
        self.TN, self.TM = NB*64, MB*64
        self.XS = self.TM*64; self.WSZ = 32*self.TN*2; self.SLOT = self.XS + self.WSZ
        self.nxd = self.XS//4096; self.nwd = self.WSZ//4096; self.nd = self.nxd + self.nwd
        self.rowb = self.TN*2; self.rows_per = 1024//self.rowb
        self.fr = (NB+MB)*8; self.F0 = 48
        self.vL = 1
        self.vXrd = [2, 3]; self.vW = [[list(range(4+8*hi+4*hb, 4+8*hi+4*hb+NB)) for hb in range(2)] for hi in range(2)]
        self.vXd = 20; self.vWd = [21, 22, 23, 24]; self.vWk = [25, 26, 27, 28]; self.vWc = [29, 30, 31, 32]
        self.vXl = 33; self.vOl = 34; self.vO = 35; self.t = list(range(36, 44))
        self.lds = S*self.SLOT
        assert self.lds <= 131072 and S % 2 == 0
    def xf(self, p, mb, hb): return self.F0 + p*self.fr + (hb*(self.NB+self.MB) + mb)*4
    def wf(self, p, nb, hb): return self.F0 + p*self.fr + (hb*(self.NB+self.MB) + self.MB + nb)*4
    def acc(self, nb, nh, mb, mh): return (nb*self.MB+mb)*16 + (mh*2+nh)*4
    def init(self):
        a, t, NB, MB = self.a, self.t, self.NB, self.MB
        L = self.vL
        a(f'v_lshrrev_b32 v{t[0]}, 6, v0\ns_nop 0\nv_readfirstlane_b32 s{self.sWv}, v{t[0]}\nv_and_b32 v{L}, 63, v0')
        a(f's_and_b32 s{self.sWn_}, s{self.sWv}, 1\ns_lshr_b32 s{self.sWm_}, s{self.sWv}, 1')
        def fsw(dst, sh):
            a(f'v_bfe_u32 v{t[4]}, v{L}, {sh}, 1\nv_bfe_u32 v{t[5]}, v{L}, {sh+1}, 1\nv_xor_b32 v{t[4]}, v{t[4]}, v{t[5]}\nv_lshl_add_u32 v{dst}, v{t[4]}, 1, v{t[5]}')
        fsw(t[2], 2)
        a(f'v_and_b32 v{t[0]}, 15, v{L}\nv_lshrrev_b32 v{t[1]}, 4, v{L}\nv_xor_b32 v{t[1]}, v{t[1]}, v{t[2]}\nv_lshlrev_b32 v{t[1]}, 4, v{t[1]}\nv_lshl_add_u32 v{t[1]}, v{t[0]}, 6, v{t[1]}')
        a(f's_mul_i32 s{self.sT[0]}, s{self.sWm_}, {MB*32*64}\nv_add_u32 v{self.vXrd[0]}, s{self.sT[0]}, v{t[1]}\nv_add_u32 v{self.vXrd[1]}, 65536, v{self.vXrd[0]}')
        a(f'v_bfe_u32 v{t[0]}, v{L}, 2, 2\nv_lshrrev_b32 v{t[1]}, 4, v{L}\nv_lshl_add_u32 v{t[1]}, v{t[1]}, 3, v{t[0]}\nv_mul_u32_u24 v{t[1]}, {self.rowb}, v{t[1]}')
        a(f'v_and_b32 v{t[2]}, 3, v{L}\nv_lshlrev_b32 v{t[2]}, 3, v{t[2]}\nv_bfe_u32 v{t[3]}, v{L}, 4, 1\nv_lshl_add_u32 v{t[2]}, v{t[3]}, 5, v{t[2]}\nv_add_u32 v{t[1]}, v{t[1]}, v{t[2]}\nv_add_u32 v{t[1]}, {self.XS}, v{t[1]}')
        a(f's_mul_i32 s{self.sT[0]}, s{self.sWn_}, {NB}')
        for nb in range(NB):
            r = self.vW[0][0][nb]
            a(f's_add_u32 s{self.sT[1]}, s{self.sT[0]}, {nb}\nv_xor_b32 v{t[2]}, s{self.sT[1]}, v{t[0]}\nv_lshl_add_u32 v{r}, v{t[2]}, 6, v{t[1]}')
            a(f'v_xor_b32 v{self.vW[0][1][nb]}, 32, v{r}\nv_add_u32 v{self.vW[1][0][nb]}, 65536, v{r}\nv_add_u32 v{self.vW[1][1][nb]}, 65536, v{self.vW[0][1][nb]}')
        fsw(t[1], 4)
        a(f'v_and_b32 v{t[0]}, 3, v{L}\nv_xor_b32 v{t[0]}, v{t[0]}, v{t[1]}\nv_lshlrev_b32 v{t[0]}, 4, v{t[0]}\nv_lshrrev_b32 v{t[1]}, 2, v{L}\nv_lshl_add_u32 v{t[0]}, v{t[1]}, 6, v{t[0]}')
        a(f's_mul_i32 s{self.sM0x}, s{self.sWv}, {self.nxd*1024}\nv_add_u32 v{self.vXl}, s{self.sM0x}, v{t[0]}')
        lpr = 64//self.rows_per
        for j in range(self.nwd):
            k, c = self.vWk[j], self.vWc[j]
            a(f's_mul_i32 s{self.sT[0]}, s{self.sWv}, {self.nwd*self.rows_per}\ns_add_u32 s{self.sT[0]}, s{self.sT[0]}, {j*self.rows_per}')
            a(f'v_lshrrev_b32 v{k}, {lpr.bit_length()-1}, v{L}\nv_add_u32 v{k}, s{self.sT[0]}, v{k}')
            a(f'v_and_b32 v{t[1]}, 3, v{k}\nv_lshlrev_b32 v{t[1]}, 2, v{t[1]}\nv_and_b32 v{t[2]}, {lpr-1}, v{L}\nv_xor_b32 v{t[1]}, v{t[1]}, v{t[2]}')
            a(f'v_bfe_u32 v{t[2]}, v{k}, 3, 1\nv_lshlrev_b32 v{t[2]}, 1, v{t[2]}\nv_xor_b32 v{t[1]}, v{t[1]}, v{t[2]}\nv_lshlrev_b32 v{c}, 4, v{t[1]}\nv_subrev_u32 v{c}, {j*1024}, v{c}')
        a(f's_mul_i32 s{self.sM0w}, s{self.sWv}, {self.nwd*1024}\ns_add_u32 s{self.sM0w}, s{self.sM0w}, {self.XS}')
        a(f'v_bfe_u32 v{t[1]}, v{L}, 4, 1\nv_lshlrev_b32 v{t[1]}, 5, v{t[1]}\nv_bfe_u32 v{t[2]}, v{L}, 5, 1\nv_lshl_add_u32 v{self.vOl}, v{t[2]}, 4, v{t[1]}')
    def setup(self):
        a = self.a
        a(f'v_add_u32 v{self.vXd}, s{self.sXo}, v{self.vXl}')
        for j in range(self.nwd):
            a(f'v_mul_lo_u32 v{self.vWd[j]}, v{self.vWk[j]}, s{self.sLdb}\nv_add_u32 v{self.vWd[j]}, v{self.vWd[j]}, v{self.vWc[j]}\nv_add_u32 v{self.vWd[j]}, s{self.sWn}, v{self.vWd[j]}')
        a(f's_mov_b32 s{self.sXs}, 0\ns_mov_b32 s{self.sWs}, 0\ns_lshl_b32 s{self.sWstep}, s{self.sLdb}, 5')
    def dma(self, slot):
        L = []
        for j in range(self.nxd):
            pre = f's_add_u32 m0, s{self.sM0x}, {slot*self.SLOT}\ns_nop 0\n' if j == 0 else ''
            post = f'\ns_add_u32 s{self.sXs}, s{self.sXs}, {M*64}' if j == self.nxd-1 else ''
            L.append(pre + f'buffer_load_dwordx4 v{self.vXd}, s[{self.SRD_WS}:{self.SRD_WS+3}], s{self.sXs} offen offset:{j*1024} lds' + post)
        for j in range(self.nwd):
            pre = f's_add_u32 m0, s{self.sM0w}, {slot*self.SLOT}\ns_nop 0\n' if j == 0 else ''
            post = f'\ns_add_u32 s{self.sWs}, s{self.sWs}, s{self.sWstep}' if j == self.nwd-1 else ''
            L.append(pre + f'buffer_load_dwordx4 v{self.vWd[j]}, s[{self.SRD_W}:{self.SRD_W+3}], s{self.sWs} offen offset:{j*1024} lds' + post)
        return L
    def reads(self, slot, p):
        L = []
        for i in range(max(self.NB, self.MB)):
            for hb in range(2):
                if i < self.NB:
                    for hh in range(2):
                        o = slot*self.SLOT + hh*4*self.rowb; hi = int(o >= 65536)
                        L.append(f'ds_read_b64_tr_b16 {vr(self.wf(p,i,hb)+2*hh,2)}, v{self.vW[hi][hb][i]} offset:{o-65536*hi}')
                if i < self.MB:
                    o = slot*self.SLOT + i*2048 + hb*1024; hi = int(o >= 65536)
                    L.append(f'ds_read_b128 {vr(self.xf(p,i,hb),4)}, v{self.vXrd[hi]} offset:{o-65536*hi}')
        return L
    def mfmas(self, p):
        return [f'v_mfma_f32_16x16x32_bf16 {ar(self.acc(nb,nh,mb,mh),4)}, {vr(self.wf(p,nb,nh),4)}, {vr(self.xf(p,mb,mh),4)}, {ar(self.acc(nb,nh,mb,mh),4)}'
                for nb in range(self.NB) for nh in range(2) for mb in range(self.MB) for mh in range(2)]
    def prologue(self):
        a = self.a
        a('s_barrier')
        for s in range(self.S):
            for x in self.dma(s): a(x)
        for i in range(self.NB*self.MB*16): a(f'v_accvgpr_write_b32 a{i}, 0')
        a(f's_waitcnt vmcnt({self.nd*(self.S-1)})\ns_barrier')
        for x in self.reads(0, 0): a(x)
        a(f's_mov_b32 s{self.sCnt}, s{self.sNK}')
    def loop(self, tag, hook=None):
        a = self.a
        a('.p2align 6'); a.lab(f'{self.name}_loop{tag}')
        if hook: hook(a)
        for u in range(self.S):
            p = u & 1
            R = self.reads((u+1) % self.S, p ^ 1); D = self.dma(u)
            fill = []; ri = di = 0; step = max(1, len(R)//len(D))
            while ri < len(R) or di < len(D):
                for _ in range(step):
                    if ri < len(R): fill.append(R[ri]); ri += 1
                if di < len(D): fill.append(D[di]); di += 1
            m = self.mfmas(p)
            a(f's_waitcnt vmcnt({self.nd*(self.S-2)}) lgkmcnt(0)\ns_barrier')
            for x in spread(m, fill, 0, len(m)-6): a(x)
        a(f's_sub_u32 s{self.sCnt}, s{self.sCnt}, 1\ns_cmp_lg_u32 s{self.sCnt}, 0\ns_cbranch_scc1 {self.name}_loop{tag}')
    def epilogue_kb(self, sOo, relu, sc=''):
        a, t = self.a, self.t
        a('s_waitcnt lgkmcnt(0)')
        a(f'v_and_b32 v{t[0]}, 15, v{self.vL}\nv_lshl_add_u32 v{t[0]}, v{t[0]}, 6, v{self.vOl}')
        a(f's_mul_i32 s{self.sT[0]}, s{self.sWn_}, {self.NB*M*64}\ns_mul_i32 s{self.sT[1]}, s{self.sWm_}, {self.MB*2048}\ns_add_u32 s{self.sT[0]}, s{self.sT[0]}, s{self.sT[1]}\ns_add_u32 s{self.sT[0]}, s{self.sT[0]}, s{sOo}')
        a(f'v_add_u32 v{self.vO}, s{self.sT[0]}, v{t[0]}\ns_nop 7')
        for nb in range(self.NB):
            for mb in range(self.MB):
                T = self.F0 + ((nb*self.MB+mb) % 2)*24
                if mb % 2 == 0: a(f's_mov_b32 s{self.sT[2]}, {nb*M*64 + mb*2048}')
                for r in range(16): a(f'v_accvgpr_read_b32 v{T+8+r}, a{self.acc(nb,0,mb,0)+r}')
                for r in range(8): a(f'v_cvt_pk_bf16_f32 v{T+r}, v{T+8+2*r}, v{T+9+2*r}')
                if relu:
                    for r in range(8): a(f'v_pk_max_i16 v{T+r}, v{T+r}, 0')
                a(f's_nop 1\nv_permlane16_swap_b32 v{T}, v{T+2}\nv_permlane16_swap_b32 v{T+1}, v{T+3}\nv_permlane16_swap_b32 v{T+4}, v{T+6}\nv_permlane16_swap_b32 v{T+5}, v{T+7}')
                o = (mb % 2)*2048
                W = f's[{self.SRD_WS}:{self.SRD_WS+3}]'
                a(f'buffer_store_dwordx4 {vr(T,4)}, v{self.vO}, {W}, s{self.sT[2]} offen offset:{o}{sc}\nbuffer_store_dwordx4 {vr(T+4,4)}, v{self.vO}, {W}, s{self.sT[2]} offen offset:{o+1024}{sc}')
    def epilogue_out(self, sOo, SRD_X):
        a, t = self.a, self.t
        a('s_waitcnt lgkmcnt(0)')
        a(f'v_and_b32 v{t[0]}, 15, v{self.vL}\nv_lshl_add_u32 v{t[0]}, v{t[0]}, 11, v{self.vOl}')
        a(f's_mul_i32 s{self.sT[0]}, s{self.sWn_}, {self.NB*64}\ns_mul_i32 s{self.sT[1]}, s{self.sWm_}, {self.MB*32*2048}\ns_add_u32 s{self.sT[0]}, s{self.sT[0]}, s{self.sT[1]}\ns_add_u32 s{self.sT[0]}, s{self.sT[0]}, s{sOo}')
        a(f'v_add_u32 v{self.vO}, s{self.sT[0]}, v{t[0]}\ns_mov_b32 s{self.sT[3]}, 0xffff0000')
        XR = self.F0 + 48
        n = 0
        for mb in range(self.MB):
            for mh in range(2):
                a(f's_mov_b32 s{self.sT[2]}, {(mb*32+mh*16)*2048}')
                for nb in range(self.NB):
                    a(f'buffer_load_dwordx4 {vr(XR+4*n,4)}, v{self.vO}, s[{SRD_X}:{SRD_X+3}], s{self.sT[2]} offen offset:{nb*64}'); n += 1
        a('s_nop 7')
        n = 0; tot = self.MB*2*self.NB
        for mb in range(self.MB):
            for mh in range(2):
                a(f's_mov_b32 s{self.sT[2]}, {(mb*32+mh*16)*2048}')
                for nb in range(self.NB):
                    T = self.F0 + (n % 2)*16
                    for r in range(8): a(f'v_accvgpr_read_b32 v{T+r}, a{self.acc(nb,0,mb,mh)+r}')
                    a('s_nop 1')
                    for r in range(4): a(f'v_permlane16_swap_b32 v{T+r}, v{T+4+r}')
                    a(f's_waitcnt vmcnt({tot-1})')
                    for r in range(4):
                        a(f'v_lshlrev_b32 v{T+8}, 16, v{XR+4*n+r}\nv_and_b32 v{T+9}, s{self.sT[3]}, v{XR+4*n+r}\nv_add_f32 v{T+2*r}, v{T+2*r}, v{T+8}\nv_add_f32 v{T+2*r+1}, v{T+2*r+1}, v{T+9}')
                        a(f'v_cvt_pk_bf16_f32 v{T+12+r}, v{T+2*r}, v{T+2*r+1}')
                    a(f'buffer_store_dwordx4 {vr(T+12,4)}, v{self.vO}, s[{self.SRD_O}:{self.SRD_O+3}], s{self.sT[2]} offen offset:{nb*64}')
                    n += 1
```

```python
M = 2048
MBY = 1 << 20
WS_SIZE = 256 * MBY
OFF_C    = 0
OFF_BC   = 0
OFF_D    = 0xC0000
OFF_A    = 0xF0000
OFF_B    = 0x1B0000
OFF_TAB  = 0x330000
ARM_END  = 0x331000
OFF_CNT  = 0x340000
OFF_PAR  = 0x341000
OFF_XN   = 8 * MBY
OFF_K    = 16 * MBY
OFF_V    = 32 * MBY
OFF_Q    = 48 * MBY
OFF_H    = 64 * MBY
OFF_O    = 78 * MBY
OFF_KM   = 96 * MBY
OFF_VM   = 100 * MBY
OFF_STAMP= 104 * MBY
OOB = 0x80000000
```

```python
from asmlib import *
from layout import *
import struct
def f32(x): return struct.unpack('<I', struct.pack('<f', x))[0]

def wave_sum(a, v, t):
    for ror in (8, 4, 2, 1):
        a(f's_nop 1\nv_add_f32_dpp v{v}, v{v}, v{v} row_ror:{ror} row_mask:0xf bank_mask:0xf')
    a(f'v_mov_b32 v{t}, v{v}\ns_nop 1\nv_permlane16_swap_b32 v{v}, v{t}\nv_add_f32 v{v}, v{v}, v{t}')
    a(f'v_mov_b32 v{t}, v{v}\ns_nop 1\nv_permlane32_swap_b32 v{v}, v{t}\nv_add_f32 v{v}, v{v}, v{t}')

def gen_prep(name, nwg=256):
    a = Asm(); a(khead(name))
    END = name+'_end'
    a(f's_cmp_ge_u32 s2, {nwg}\ns_cbranch_scc1 {END}')
    a('s_load_dwordx2 s[8:9], s[0:1], 0\ns_load_dwordx2 s[12:13], s[0:1], 96')
    a(f's_mov_b32 s10, {M*1024*2}\ns_mov_b32 s11, 0x20000\ns_mov_b32 s14, {WS_SIZE}\ns_mov_b32 s15, 0x20000')
    a('v_and_b32 v1, 63, v0\nv_lshrrev_b32 v2, 6, v0\ns_lshl_b32 s3, s2, 3\nv_add_u32 v2, s3, v2')
    a('v_lshlrev_b32 v3, 11, v2\nv_lshl_add_u32 v3, v1, 4, v3')
    a(f'v_lshrrev_b32 v4, 2, v1\nv_lshlrev_b32 v4, 17, v4\nv_and_b32 v5, 3, v1\nv_lshl_add_u32 v4, v5, 4, v4\nv_lshl_add_u32 v4, v2, 6, v4\nv_add_u32 v4, {OFF_XN}, v4')
    a('s_waitcnt lgkmcnt(0)')
    lp = name+'_np'
    a(f'v_readfirstlane_b32 s20, v0\ns_or_b32 s20, s20, s2\ns_cmp_lg_u32 s20, 0\ns_cbranch_scc1 {lp}')
    a(f'v_mov_b32 v40, 0\nv_mov_b32 v43, -1\ns_mov_b32 s24, -1\ns_mov_b32 s25, -1')
    a('buffer_load_dword v42, v40, s[12:15], 0 offen sc1\ns_waitcnt vmcnt(0)')
    for k in range(6):
        for h in range(2):
            off = k*16384 + h*8192
            a(f'v_mov_b32 v41, {off}\nbuffer_store_dword v43, v41, s[12:15], 0 offen sc1\ns_waitcnt vmcnt(0)\ns_memtime s[26:27]\ns_waitcnt lgkmcnt(0)')
            a(f'buffer_load_dword v42, v41, s[12:15], 0 offen sc1\ns_waitcnt vmcnt(0)\ns_memtime s[28:29]\ns_waitcnt lgkmcnt(0)\ns_sub_u32 s28, s28, s26\ns_min_u32 s{24+h}, s{24+h}, s28')
    a('s_getreg_b32 s26, hwreg(HW_REG_XCC_ID)\ns_bfe_u32 s26, s26, 0x10002\ns_cmp_lt_u32 s25, s24\ns_cselect_b32 s27, 1, 0\ns_xor_b32 s27, s27, s26')
    a(f'v_mov_b32 v42, s27\nv_mov_b32 v41, {OFF_PAR}\nbuffer_store_dword v42, v41, s[12:15], 0 offen')
    a.lab(lp)
    a('s_mov_b32 s20, 8192')
    for r in range(2):
        so = '0' if r == 0 else 's20'
        a(f'buffer_load_dwordx4 v[{8+8*r}:{11+8*r}], v3, s[8:11], {so} offen\nbuffer_load_dwordx4 v[{12+8*r}:{15+8*r}], v3, s[8:11], {so} offen offset:1024')
    per = ARM_END // 16 // 256
    assert ARM_END % 4096 == 0
    a('v_mov_b32 v44, -1\nv_mov_b32 v45, -1\nv_mov_b32 v46, -1\nv_mov_b32 v47, -1')
    a(f's_mul_i32 s21, s2, {per*16}\nv_lshlrev_b32 v43, 4, v0\nv_add_u32 v43, s21, v43')
    nfull = per // 256; rem = per % 256
    for k in range(nfull):
        a(f's_mov_b32 s22, {k*4096}\nbuffer_store_dwordx4 v[44:47], v43, s[12:15], s22 offen')
    if rem:
        a(f'v_cmp_gt_u32 vcc, {rem}, v0\nv_mov_b32 v48, {OOB}\ns_mov_b32 s22, {nfull*4096}\nv_cndmask_b32 v43, v48, v43, vcc\nbuffer_store_dwordx4 v[44:47], v43, s[12:15], s22 offen')
    lz = name+'_nz'
    a(f's_cmp_lg_u32 s2, 1\ns_cbranch_scc1 {lz}')
    a(f'v_mov_b32 v48, 0\nv_mov_b32 v49, 0\nv_mov_b32 v50, 0\nv_mov_b32 v51, 0\nv_lshlrev_b32 v43, 4, v0\nv_add_u32 v43, {OFF_CNT}, v43\nbuffer_store_dwordx4 v[48:51], v43, s[12:15], 0 offen')
    a.lab(lz)
    a(f's_mov_b32 s23, {f32(1/1024.):#x}\ns_mov_b32 s24, {f32(1e-5):#x}\ns_mov_b32 s25, 0xffff0000\ns_mov_b32 s22, {16*131072}')
    a('s_waitcnt vmcnt(0)')
    for r in range(2):
        B = 8+8*r; F = 24
        for k in range(8): a(f'v_lshlrev_b32 v{F+2*k}, 16, v{B+k}\nv_and_b32 v{F+2*k+1}, s25, v{B+k}')
        a(f'v_add_f32 v6, v{F}, v{F+1}')
        for k in range(2, 16): a(f'v_add_f32 v6, v6, v{F+k}')
        wave_sum(a, 6, 7)
        a('v_mul_f32 v6, s23, v6')
        a(f'v_sub_f32 v40, v{F}, v6\nv_mul_f32 v5, v40, v40')
        for k in range(1, 16): a(f'v_sub_f32 v40, v{F+k}, v6\nv_fmac_f32 v5, v40, v40')
        wave_sum(a, 5, 7)
        a('v_mul_f32 v5, s23, v5')
        a('v_cvt_pk_bf16_f32 v6, v6, v5\nv_and_b32 v5, s25, v6\nv_lshlrev_b32 v6, 16, v6\nv_add_f32 v5, s24, v5')
        a('v_cvt_pk_bf16_f32 v5, v5, v5\nv_lshlrev_b32 v5, 16, v5\nv_sqrt_f32 v5, v5\ns_nop 0\nv_cvt_pk_bf16_f32 v5, v5, v5\nv_lshlrev_b32 v5, 16, v5\nv_rcp_f32 v7, v5')
        for k in range(8):
            a(f'v_sub_f32 v{F+2*k}, v{F+2*k}, v6\nv_sub_f32 v{F+2*k+1}, v{F+2*k+1}, v6\nv_cvt_pk_bf16_f32 v40, v{F+2*k}, v{F+2*k+1}')
            a(f'v_lshlrev_b32 v{F+2*k}, 16, v40\nv_and_b32 v{F+2*k+1}, s25, v40')
            for j in (2*k, 2*k+1):
                a(f'v_mul_f32 v41, v{F+j}, v7\nv_fma_f32 v42, -v41, v5, v{F+j}\nv_fma_f32 v{F+j}, v42, v7, v41')
            a(f'v_cvt_pk_bf16_f32 v{B+k}, v{F+2*k}, v{F+2*k+1}')
        a(f'buffer_store_dwordx4 v[{B}:{B+3}], v4, s[12:15], 0 offen offset:{r*256}\nbuffer_store_dwordx4 v[{B+4}:{B+7}], v4, s[12:15], s22 offen offset:{r*256}')
    a.lab(END); a('s_endpgm')
    return a.text()
```

```python
import sys
from asmlib import *
from layout import *
from prep_gen import gen_prep
from gemm_gen import Gemm
from attn_gen import gen_attn_kernel
from chain_gen import gen_chain, CHAIN_LDS
KN = 'parallel_sum__memory_aug_recurrent_mem_tr__dense_activation_relu__prompt'

def gen_gemm1(name):
    a = Asm(); a(khead(name)); END = name+'_end'
    g = Gemm(a, name)
    a(f's_cmp_ge_u32 s2, 256\ns_cbranch_scc1 {END}')
    a(f's_load_dwordx2 s[8:9], s[0:1], 96\ns_mov_b32 s10, {WS_SIZE}\ns_mov_b32 s11, 0x20000\ns_mov_b32 s15, 0x20000')
    a('s_load_dwordx4 s[48:51], s[0:1], 16\ns_load_dwordx2 s[52:53], s[0:1], 32\ns_load_dwordx2 s[54:55], s[0:1], 64')
    g.init()
    a('s_mov_b32 s46, s2\ns_waitcnt lgkmcnt(0)')
    a.lab(name+'_job')
    a(f's_and_b32 s40, s46, 7\ns_lshl_b32 s40, s40, 14\ns_add_u32 s{g.sXo}, s40, {OFF_XN}\ns_mov_b32 s{g.sNK}, 8')
    a(f's_cmp_ge_u32 s46, 384\ns_cbranch_scc1 {name}_ffn')
    a(f's_bfe_u32 s41, s46, 0x40003\ns_lshl_b32 s{g.sWn}, s41, 9\ns_mov_b32 s{g.sLdb}, 8192\ns_mov_b32 s14, {1024*8192}\ns_mov_b32 s56, 0')
    a(f's_lshr_b32 s42, s46, 7\ns_mov_b32 s12, s50\ns_mov_b32 s13, s51\ns_mov_b32 s47, {OFF_K}')
    a(f's_cmp_eq_u32 s42, 0\ns_cbranch_scc1 {name}_go\ns_mov_b32 s12, s52\ns_mov_b32 s13, s53\ns_mov_b32 s47, {OFF_V}')
    a(f's_cmp_eq_u32 s42, 1\ns_cbranch_scc1 {name}_go\ns_mov_b32 s12, s48\ns_mov_b32 s13, s49\ns_mov_b32 s47, {OFF_Q}\ns_branch {name}_go')
    a.lab(name+'_ffn')
    a(f's_sub_u32 s41, s46, 384\ns_lshr_b32 s41, s41, 3\ns_lshl_b32 s{g.sWn}, s41, 9\ns_mov_b32 s{g.sLdb}, 7168\ns_mov_b32 s14, {1024*7168}\ns_mov_b32 s56, 1')
    a(f's_mov_b32 s12, s54\ns_mov_b32 s13, s55\ns_mov_b32 s47, {OFF_H}')
    a.lab(name+'_go')
    a(f's_lshl_b32 s41, s41, 20\ns_add_u32 s47, s47, s41\ns_add_u32 s47, s47, s40')
    g.setup(); g.prologue(); g.loop('')
    a(f's_cmp_eq_u32 s56, 1\ns_cbranch_scc1 {name}_er')
    g.epilogue_kb(47, False); a(f's_branch {name}_nx')
    a.lab(name+'_er'); g.epilogue_kb(47, True)
    a.lab(name+'_nx')
    a(f's_add_u32 s46, s46, 256\ns_cmp_lt_u32 s46, 496\ns_cbranch_scc1 {name}_job')
    a.lab(END); a('s_endpgm')
    return a.text(), g.lds

def gen_final(name):
    a = Asm(); a(khead(name)); END = name+'_end'
    g = Gemm(a, name, NB=2, MB=2, S=8)
    a(f's_cmp_ge_u32 s2, 128\ns_cbranch_scc1 {END}')
    a(f's_load_dwordx2 s[8:9], s[0:1], 96\ns_mov_b32 s10, {WS_SIZE}\ns_mov_b32 s11, 0x20000')
    a(f's_load_dwordx2 s[12:13], s[0:1], 72\ns_mov_b32 s14, {3584*2048}\ns_mov_b32 s15, 0x20000\ns_load_dwordx2 s[48:49], s[0:1], 40')
    a(f's_load_dwordx2 s[16:17], s[0:1], 80\ns_mov_b32 s18, {M*2048}\ns_mov_b32 s19, 0x20000')
    a(f's_load_dwordx2 s[52:53], s[0:1], 0\ns_mov_b32 s54, {M*2048}\ns_mov_b32 s55, 0x20000')
    g.init()
    a(f's_and_b32 s40, s2, 15\ns_lshr_b32 s41, s2, 4\ns_lshl_b32 s42, s40, 13\ns_add_u32 s{g.sXo}, s42, {OFF_H}\ns_lshl_b32 s{g.sWn}, s41, 8\ns_mov_b32 s{g.sLdb}, 2048\ns_mov_b32 s{g.sNK}, 30')
    a(f's_lshl_b32 s47, s40, 18\ns_add_u32 s47, s47, s{g.sWn}\ns_waitcnt lgkmcnt(0)')
    g.setup(); g.prologue()
    def hook(a):
        a(f's_cmp_eq_u32 s{g.sCnt}, {30-13}\ns_cbranch_scc0 {name}_h\ns_mov_b32 s12, s48\ns_mov_b32 s13, s49\ns_mov_b32 s14, {4096*2048}\ns_mov_b32 s{g.sWs}, 0')
        a.lab(name+'_h')
    g.loop('', hook)
    g.epilogue_out(47, 52)
    a.lab(END); a('s_endpgm')
    return a.text(), g.lds

def gen_chain_kernel(name, **kw):
    a = Asm(); a(khead(name))
    a(f's_cmp_ge_u32 s2, 256\ns_cbranch_scc1 {name}_end\ns_bitcmp1_b32 s2, 2\ns_cbranch_scc1 {name}_end')
    a(f's_load_dwordx2 s[4:5], s[0:1], 96\ns_lshr_b32 s3, s2, 3\ns_and_b32 s2, s2, 3\ns_waitcnt lgkmcnt(0)\ns_add_u32 s4, s4, {OFF_PAR}\ns_addc_u32 s5, s5, 0\ns_load_dword s4, s[4:5], 0\ns_waitcnt lgkmcnt(0)\ns_and_b32 s4, s4, 1')
    gen_chain(a, name, exit_label=name+'_end', **kw)
    a.lab(name+'_end'); a('s_endpgm')
    return a.text()

def build(**kw):
    hdr = open('cdna_kernels/%s.s.ref' % KN).read().split('\n')
    hdr = [l for l in hdr[:hdr.index('.text')] if l.startswith(';') and '@launch' not in l]
    g1, l1 = gen_gemm1('gemm1_kernel'); gf, lf = gen_final('final_kernel'); at, nv = gen_attn_kernel('attn_kernel')
    L = [('prep_kernel', 256, 0), ('gemm1_kernel', 256, l1), ('chain_kernel', 256, CHAIN_LDS), ('attn_kernel', 512, 40960), ('final_kernel', 128, lf)]
    s = '\n'.join(hdr) + '\n' + ''.join(f'; @launch kernel={k} grid=({n},1,1) block=(256,1,1) lds={l}\n' for k, n, l in L)
    s += '.amdgcn_target "amdgcn-amd-amdhsa--gfx950"\n.text\n'
    s += gen_prep('prep_kernel') + g1 + gen_chain_kernel('chain_kernel', **kw) + at + gf
    s += '.section .rodata,"a"\n'
    for k, v, ac, sg in (('prep_kernel', 64, 64, 48), ('gemm1_kernel', 512, 256, 96), ('chain_kernel', 512, 256, 96), ('attn_kernel', 168, 168, 96), ('final_kernel', 512, 256, 96)):
        s += '.p2align 6\n' + kdesc(k, v, ac, sg)
    return s, L
if __name__ == '__main__':
    s, L = build(bcpos=24, local_sc1=True)
    open('cdna_kernels/%s.s' % KN, 'w').write(s)
    print(len(s))
```

```python
from asmlib import *
from layout import *
import struct, math

RS, MS = 128, 1040
WSTR = 3*MS
LDS_P   = 19456
LDS_Z   = LDS_P + 1024
LDS_TOK = 21504
LDS_V   = LDS_TOK + 20480
CHAIN_LDS = 131072
assert CHAIN_LDS <= 163840

def gen_chain(a, name, END, nsteps=63, safe=False, stamps=False, prof=0, light=False, verify=None,
              cpos=28, nb=3, dfill=1, ksc='', abl=''):
    LS = ' sc1' if safe else ''
    sX, sSlot, sPar, sH, sC, sW = 2, 3, 4, 5, 6, 7
    SRD_WS, SRD_IN = 8, 12
    sD = [16,17,18]; sA = [19,20,21]; sA2 = 22; sB = [23,24,25]; sCr = [26,27,28]
    sKT = [29,30,31]
    sStep, sTO, sKM, sCl = 32, 33, 34, 35
    sT = list(range(36, 48))
    sXn, sVT, sTR, sTok, sXb, sPf = 48, 49, 50, 51, 52, 53
    sStamp = 56
    n = [1]
    def V(k=1, al=1):
        n[0] = (n[0]+al-1)//al*al; r = n[0]; n[0] += k; return r
    vL = V(); vL16 = V()
    vDrd, vDwr, vBrd, vBwr, vCrd, vCwr = [V() for _ in range(6)]
    vAsr, vAmr, vAvr, vAw, vAw2, vKMw = [V() for _ in range(6)]
    vLw = [V() for _ in range(6)]; vLr, vPw, vIdxM = V(), V(), V()
    vPr = [V() for _ in range(6)]
    vIdx, vKt, vVt = [V() for _ in range(3)]
    t = [V() for _ in range(5)] + [0]
    vFl = V(2,2)
    vSel = V(4,4); vOneT = V(4,4); vOneM = V(4,4); vSent = V(4,4)
    vMem = V(16,4); acc = V(24,4); vX = V(32,4); vXo = V(4,4)
    vKtf = V(8,4); vS = V(12,4); accW = V(16,4); vWm = V(16,4); vWt = V(16,4)
    vBlo = V(8,4); vBhi = V(8,4); vOut = V(4,4); vRa = V(4,4)
    vVtf = V(32,4)
    assert n[0] <= 256, n[0]
    vLs = vS+8; vF = vS; accT = vX; vRd = vMem; vVm = vMem
    vI, vHB, vG = vVtf, vVtf+1, vVtf+2
    WSD = f's[{SRD_WS}:{SRD_WS+3}]'; IND = f's[{SRD_IN}:{SRD_IN+3}]'
    aW = lambda mat, ks, eb: mat*64 + ks*16 + eb*8
    aO = lambda n2, b: 192 + n2*32 + b*8
    def stamp(k, p=0):
        if stamps and (p == prof or k == 0): a(f's_mem{"real" if rt else ""}time s[{sStamp+2*k}:{sStamp+2*k+1}]')
    mfs = lambda D, A, B, C: f'v_mfma_f32_16x16x32_bf16 {vr(D,4)}, {A}, {vr(B,4)}, {vr(D,4) if C else 0}'
    mf = lambda D, A, B, C: a(mfs(D, vr(A,4), B, C))
    def fail_check(k=0):
        if stamps: a(f's_add_u32 s{72+k}, s{72+k}, 1')
        a(f's_sub_u32 s{sTO}, s{sTO}, 1\ns_cbranch_scc1 {END}')
    chk4 = lambda r0, tt: [f'v_max3_u32 v{tt}, v{r0}, v{r0+1}, v{r0+2}', f'v_max_u32 v{tt}, v{tt}, v{r0+3}', f'v_cmp_eq_u32 vcc, -1, v{tt}']
    chk8 = lambda R: f'v_max3_u32 v{t[0]}, v{R}, v{R+1}, v{R+2}\nv_max3_u32 v{t[1]}, v{R+3}, v{R+4}, v{R+5}\nv_max3_u32 v{t[0]}, v{t[0]}, v{R+6}, v{R+7}\nv_max_u32 v{t[0]}, v{t[0]}, v{t[1]}\nv_cmp_eq_u32 vcc, -1, v{t[0]}'
    pk = lambda d, x, y: f'v_pk_add_f32 {vr(d,2)}, {vr(x,2)}, {vr(y,2)}'
    DPP8 = 'row_ror:8 row_mask:0xf bank_mask:0xf'

    if light: a('s_mov_b32 s80, s50')
    a(f's_lshr_b32 s{sH}, s{sSlot}, 2\ns_lshl_b32 s{sT[0]}, s{sX}, 3\ns_add_u32 s{sH}, s{sH}, s{sT[0]}\ns_and_b32 s{sC}, s{sSlot}, 3')
    a(f'v_lshrrev_b32 v{t[0]}, 6, v0\ns_nop 0\nv_readfirstlane_b32 s{sW}, v{t[0]}')
    a(f's_load_dwordx2 s[{SRD_WS}:{SRD_WS+1}], s[0:1], 96\ns_load_dwordx8 s[60:67], s[0:1], 16')
    a(f's_mov_b32 s{SRD_WS+2}, {WS_SIZE}\ns_mov_b32 s{SRD_WS+3}, 0x20000\ns_mov_b32 s{SRD_IN+2}, {8*MBY}\ns_mov_b32 s{SRD_IN+3}, 0x20000')
    a(f'v_and_b32 v{vL}, 63, v0\nv_and_b32 v{vI}, 7, v0\nv_bfe_u32 v{vHB}, v0, 3, 1\nv_bfe_u32 v{vG}, v0, 4, 2\nv_lshlrev_b32 v{vL16}, 4, v{vL}')
    a(f's_lshl_b32 s{sT[0]}, s{sW}, 15')
    w0, w1, w2, w3 = vX, vX+1, vX+2, vX+3
    a(f'v_lshrrev_b32 v{w2}, 3, v{vL}\nv_lshlrev_b32 v{w0}, 13, v{w2}\nv_lshl_add_u32 v{w0}, v{vI}, 4, v{w0}\nv_and_b32 v{t[1]}, 3, v{vL}')
    a(f's_lshl_b32 s{sT[1]}, s{sW}, 21\ns_lshl_b32 s{sT[2]}, s{sH}, 8\ns_add_u32 s{sT[1]}, s{sT[1]}, s{sT[2]}\ns_lshr_b32 s{sT[2]}, s{sC}, 1\ns_lshl_b32 s{sT[2]}, s{sT[2]}, 7\ns_add_u32 s{sT[1]}, s{sT[1]}, s{sT[2]}\nv_add_u32 v{w0}, s{sT[1]}, v{w0}')
    a(f'v_bfe_u32 v{t[0]}, v{vL}, 2, 2\nv_lshl_add_u32 v{t[0]}, v{vG}, 3, v{t[0]}')
    a(f's_and_b32 s{sT[2]}, s{sC}, 1\ns_lshl_b32 s{sT[2]}, s{sT[2]}, 6\ns_add_u32 s{sT[2]}, s{sT[2]}, s{sT[0]}')
    a(f'v_lshlrev_b32 v{w1}, 7, v{t[0]}\nv_lshl_add_u32 v{w3}, v{t[1]}, 5, v{w1}\nv_add_u32 v{w3}, s{sT[0]}, v{w3}\nv_lshl_add_u32 v{w1}, v{t[1]}, 3, v{w1}\nv_add_u32 v{w1}, s{sT[2]}, v{w1}')
    a(f'v_lshlrev_b32 v{w2}, 11, v{w2}\nv_lshl_add_u32 v{w2}, v{vI}, 4, v{w2}')
    a(f's_lshl_b32 s{sT[1]}, s{sH}, 18\ns_lshl_b32 s{sT[2]}, s{sC}, 9\ns_add_u32 s{sT[1]}, s{sT[1]}, s{sT[2]}\ns_lshl_b32 s{sT[2]}, s{sW}, 7\ns_add_u32 s{sT[1]}, s{sT[1]}, s{sT[2]}\nv_add_u32 v{w2}, s{sT[1]}, v{w2}')
    order = [('qkvo'.index(ch), k) for ch in word for k in range(2 if ch == 'o' else 4)]
    NP = len(order)
    def wdma(i):
        mat, ks = order[i]
        a(f's_mov_b32 s{SRD_IN}, s{60+2*mat}\ns_mov_b32 s{SRD_IN+1}, s{61+2*mat}')
        for j in range(8):
            so = (ks*8+j)*(8*8192 if mat < 3 else 8*2048)
            a(f's_add_u32 m0, s{sT[0]}, {(i%4)*8192 + j*1024}\ns_mov_b32 s{sT[3]}, {so}\nbuffer_load_dwordx4 v{w0 if mat < 3 else w2}, {IND}, s{sT[3]} offen lds')
    def wread(i):
        mat, ks = order[i]; base = (i % 4)*8192
        for b in range(2 if mat < 3 else 4):
            for u in range(2):
                for mm in range(2):
                    if mat < 3: a(f'ds_read_b64_tr_b16 {ar(aW(mat,ks,b)+u*4+mm*2,2)}, v{w1} offset:{base + (u*32+mm*4)*128 + b*32}')
                    else: a(f'ds_read_b64_tr_b16 {ar(aO(ks,b)+u*4+mm*2,2)}, v{w3} offset:{base + (u*32+mm*4)*128 + (b>>1)*16 + (b&1)*8}')
            a('s_waitcnt lgkmcnt(8)')
        a('s_waitcnt lgkmcnt(0)')
    a('s_waitcnt lgkmcnt(0)')
    for i in range(4): wdma(i)
    if early: early(a)
    a(f'v_mov_b32 v{t[5]}, {OOB}')
    sJ = sT[6]
    a(f's_mul_i32 s{sT[4]}, s{sX}, {3*16384}\ns_add_u32 s{sT[4]}, s{sT[4]}, {OFF_D}')
    a(f's_lshl_b32 s{sT[5]}, s{sW}, 12\ns_add_u32 s{sT[5]}, s{sT[5]}, s{sT[4]}\nv_add_u32 v{vDrd}, s{sT[5]}, v{vL16}')
    a(f's_lshl_b32 s{sJ}, s{sSlot}, 2\ns_add_u32 s{sJ}, s{sJ}, s{sW}')
    a(f's_lshr_b32 s{sT[5]}, s{sJ}, 1\ns_lshl_b32 s{sT[5]}, s{sT[5]}, 8\ns_and_b32 s{sT[7]}, s{sJ}, 1\ns_lshl_b32 s{sT[7]}, s{sT[7]}, 3\ns_add_u32 s{sT[5]}, s{sT[5]}, s{sT[7]}\ns_add_u32 s{sT[5]}, s{sT[5]}, s{sT[4]}')
    a(f'v_lshlrev_b32 v{t[0]}, 5, v{vI}\nv_lshl_add_u32 v{t[0]}, v{vHB}, 4, v{t[0]}\nv_lshl_add_u32 v{t[0]}, v{vG}, 2, v{t[0]}\nv_add_u32 v{vDwr}, s{sT[5]}, v{t[0]}')
    a(f'v_cmp_gt_u32 vcc, 2, v{vG}\ns_nop 1\nv_cndmask_b32 v{vDwr}, v{t[5]}, v{vDwr}, vcc')
    def nearmap(r):
        a(f'v_lshrrev_b32 v{t[1]}, 13, v{r}\nv_lshlrev_b32 v{t[1]}, 14, v{t[1]}\nv_and_b32 v{r}, 8191, v{r}\nv_add_u32 v{r}, v{r}, v{t[1]}')
        a(f's_lshl_b32 s{sT[7]}, s{sPar}, 13\ns_add_u32 s{sT[7]}, s{sT[7]}, {OFF_C}\nv_add_u32 v{r}, s{sT[7]}, v{r}')
    a(f's_mul_i32 s{sT[8]}, s{sX}, {3*131072}\ns_add_u32 s{sT[8]}, s{sT[8]}, {OFF_B}\ns_lshl_b32 s{sT[5]}, s{sJ}, 10\ns_add_u32 s{sT[9]}, s{sT[5]}, s{sT[8]}\nv_add_u32 v{vBrd}, s{sT[9]}, v{vL16}')
    a(f'v_and_b32 v{t[0]}, 1, v{vG}\nv_lshl_add_u32 v{t[0]}, v{t[0]}, 3, v{vI}\nv_lshlrev_b32 v{t[4]}, 4, v{t[0]}\nv_add_u32 v{t[0]}, s{sT[5]}, v{t[4]}')
    a(f'v_lshl_add_u32 v{vCrd}, v{vHB}, 8, v{t[0]}\ns_lshl_b32 s{sT[9]}, s{sX}, 8\nv_add_u32 v{vCwr}, s{sT[9]}, v{t[0]}')
    if c2: a(f'v_lshl_add_u32 v{vCwr}, v{vHB}, 17, v{vCwr}')
    if cmulti:
        a(f's_lshl_b32 s{sT[9]}, s{sX}, 17\nv_add_u32 v{vCrd}, s{sT[9]}, v{vCrd}\nv_lshrrev_b32 v{t[1]}, 1, v{vG}\nv_lshl_add_u32 v{t[1]}, v{t[1]}, 1, v{vHB}\nv_lshl_add_u32 v{vCwr}, v{t[1]}, 17, v{vCwr}')
    a(f'v_lshl_add_u32 v{t[0]}, v{vG}, 1, v{vHB}\ns_lshl_b32 s{sT[5]}, s{sC}, 5\ns_lshl_b32 s{sT[7]}, s{sW}, 3\ns_add_u32 s{sT[5]}, s{sT[5]}, s{sT[7]}\nv_add_u32 v{t[0]}, s{sT[5]}, v{t[0]}')
    a(f'v_lshlrev_b32 v{t[0]}, 10, v{t[0]}\nv_lshl_add_u32 v{t[0]}, v{vI}, 4, v{t[0]}\ns_and_b32 s{sT[5]}, s{sH}, 7\ns_lshl_b32 s{sT[5]}, s{sT[5]}, 7\ns_add_u32 s{sT[5]}, s{sT[5]}, s{sT[8]}\nv_add_u32 v{vBwr}, s{sT[5]}, v{t[0]}')
    a(f's_lshl_b32 s{sT[5]}, s{sH}, 13\ns_add_u32 s{sT[5]}, s{sT[5]}, {OFF_A}\ns_lshl_b32 s{sT[7]}, s{sC}, 11\ns_add_u32 s{sT[7]}, s{sT[7]}, s{sT[5]}')
    a(f'v_add_u32 v{vAsr}, s{sT[5]}, v{vL16}\nv_add_u32 v{t[4]}, 1024, v{t[4]}\nv_lshl_add_u32 v{vAmr}, v{vHB}, 11, v{t[4]}\nv_add_u32 v{vAmr}, s{sT[5]}, v{vAmr}')
    a(f'v_add_u32 v{vAw2}, s{sT[7]}, v{t[4]}\nv_and_b32 v{t[1]}, 0x28, v{vL}\nv_cmp_eq_u32 vcc, 0x20, v{t[1]}\ns_nop 1\nv_cndmask_b32 v{vAw2}, v{t[5]}, v{vAw2}, vcc')
    a(f'v_and_b32 v{t[0]}, 1, v{vG}\nv_lshl_add_u32 v{t[0]}, v{t[0]}, 1, v{vHB}\nv_lshlrev_b32 v{t[0]}, 4, v{t[0]}\nv_lshl_add_u32 v{t[0]}, v{vI}, 6, v{t[0]}')
    a(f'v_lshrrev_b32 v{t[1]}, 1, v{vG}\nv_lshl_add_u32 v{t[0]}, v{t[1]}, 11, v{t[0]}\nv_add_u32 v{t[0]}, 1536, v{t[0]}\nv_add_u32 v{vAvr}, s{sT[5]}, v{t[0]}')
    a(f'v_lshlrev_b32 v{t[0]}, 4, v{vG}\nv_lshl_add_u32 v{t[0]}, v{vI}, 6, v{t[0]}')
    sKB = sT[8]
    a(f's_lshl_b32 s{sKB}, s{sH}, 2\ns_add_u32 s{sKB}, s{sKB}, s{sC}\ns_lshl_b32 s{sT[9]}, s{sKB}, 15')
    lw0, lw1 = a.newlab(name+'_p'), a.newlab(name+'_p')
    a(f'v_cmp_eq_u32 vcc, 0, v{vHB}\ns_cmp_eq_u32 s{sW}, 0\ns_cbranch_scc1 {lw0}')
    a(f'v_mov_b32 v{vAw2}, {OOB}')
    a(f'v_add_u32 v{vAw}, 1536, v{t[0]}\nv_add_u32 v{vAw}, s{sT[7]}, v{vAw}\nv_cndmask_b32 v{vAw}, v{t[5]}, v{vAw}, vcc')
    a(f's_add_u32 s{sT[10]}, s{sT[9]}, {OFF_VM}\nv_add_u32 v{vKMw}, s{sT[10]}, v{t[0]}\nv_cndmask_b32 v{vKMw}, v{t[5]}, v{vKMw}, vcc\ns_branch {lw1}')
    a.lab(lw0)
    a(f'v_add_u32 v{vAw}, s{sT[7]}, v{vL16}\ns_add_u32 s{sT[10]}, s{sT[9]}, {OFF_KM}\nv_add_u32 v{vKMw}, s{sT[10]}, v{t[0]}\nv_cndmask_b32 v{vKMw}, v{vKMw}, v{t[5]}, vcc')
    a.lab(lw1)
    lk = a.newlab(name+'_p')
    a(f's_bitcmp1_b32 s{sW}, 0\ns_cbranch_scc0 {lk}\nv_mov_b32 v{vKMw}, {OOB}'); a.lab(lk)
    a(f'v_and_b32 v{t[0]}, 15, v{vL}\nv_lshlrev_b32 v{t[0]}, 6, v{t[0]}\nv_lshl_add_u32 v{t[0]}, v{vG}, 4, v{t[0]}')
    a(f's_lshl_b32 s{sT[9]}, s{sKB}, 17\ns_add_u32 s{sT[9]}, s{sT[9]}, {OFF_K}\nv_add_u32 v{vKt}, s{sT[9]}, v{t[0]}')
    a(f's_lshl_b32 s{sT[9]}, s{sH}, 19\ns_add_u32 s{sT[9]}, s{sT[9]}, {OFF_V}\nv_add_u32 v{vVt}, s{sT[9]}, v{t[0]}')
    a(f's_mul_i32 s{sT[9]}, s{sW}, {WSTR}\nv_lshlrev_b32 v{t[0]}, 8, v{vG}\nv_and_b32 v{t[1]}, 1, v{vG}\nv_lshl_add_u32 v{t[0]}, v{t[1]}, 6, v{t[0]}')
    a(f'v_and_b32 v{t[1]}, 15, v{vL}\nv_lshl_add_u32 v{vLw[0]}, v{t[1]}, 2, v{t[0]}')
    a(f'v_bfe_u32 v{t[1]}, v{vL}, 1, 1\nv_lshlrev_b32 v{t[1]}, 3, v{t[1]}\nv_bfe_u32 v{t[2]}, v{vL}, 2, 2\nv_lshl_add_u32 v{t[1]}, v{t[2]}, 1, v{t[1]}\nv_and_b32 v{t[2]}, 1, v{vL}\nv_add_u32 v{t[1]}, v{t[1]}, v{t[2]}')
    a(f'v_lshl_add_u32 v{vLw[4]}, v{t[1]}, 2, v{t[0]}\nv_xor_b32 v{vLw[1]}, 64, v{vLw[0]}\nv_xor_b32 v{vLw[5]}, 64, v{vLw[4]}')
    a(f'v_add_u32 v{vLw[0]}, s{sT[9]}, v{vLw[0]}\nv_add_u32 v{vLw[1]}, s{sT[9]}, v{vLw[1]}\nv_add_u32 v{vLw[2]}, {MS}, v{vLw[0]}\nv_add_u32 v{vLw[3]}, {MS}, v{vLw[1]}')
    a(f's_add_u32 s{sT[9]}, s{sT[9]}, {2*MS}\nv_add_u32 v{vLw[4]}, s{sT[9]}, v{vLw[4]}\nv_add_u32 v{vLw[5]}, s{sT[9]}, v{vLw[5]}')
    a(f'v_lshlrev_b32 v{t[0]}, 7, v{vI}\nv_and_b32 v{t[3]}, 2, v{vI}\nv_xor_b32 v{t[3]}, v{t[3]}, v{vG}\nv_lshl_add_u32 v{t[1]}, v{t[3]}, 5, v{t[0]}\nv_mul_u32_u24 v{t[2]}, {MS}, v{vHB}\nv_add_u32 v{vLr}, v{t[1]}, v{t[2]}')
    l1 = a.newlab(name+'_p')
    a(f's_cmp_eq_u32 s{sW}, 0\ns_cbranch_scc1 {l1}')
    a(f'v_mul_u32_u24 v{t[2]}, {WSTR}, v{vHB}\nv_add_u32 v{t[2]}, {2*MS}, v{t[2]}\nv_add_u32 v{vLr}, v{t[1]}, v{t[2]}')
    a(f's_cmp_eq_u32 s{sW}, 1\ns_cbranch_scc1 {l1}')
    a(f'v_lshrrev_b32 v{t[1]}, 1, v{t[3]}\nv_lshl_add_u32 v{t[0]}, v{t[1]}, 6, v{t[0]}\nv_and_b32 v{t[1]}, 1, v{vG}\nv_lshl_add_u32 v{t[0]}, v{t[1]}, 4, v{t[0]}\nv_add_u32 v{vLr}, v{t[0]}, v{t[2]}')
    a.lab(l1)
    a(f'v_add_u32 v{vPw}, {LDS_P}, v{vL16}\nv_xor_b32 v{t[0]}, 128, v{vPw}\nv_add_u32 v{t[1]}, 8, v{vPw}\nv_mov_b32 v{t[2]}, {LDS_Z}')
    a(f'v_cmp_eq_u32 vcc, 0, v{vHB}\ns_nop 1')
    a(f'v_cndmask_b32 v{vPr[0]}, v{t[2]}, v{vPw}, vcc\nv_cndmask_b32 v{vPr[1]}, v{t[2]}, v{t[0]}, vcc\nv_cndmask_b32 v{vPr[2]}, v{t[2]}, v{t[1]}, vcc')
    a(f'v_cndmask_b32 v{vPr[3]}, v{t[0]}, v{t[2]}, vcc\nv_cndmask_b32 v{vPr[4]}, v{vPw}, v{t[2]}, vcc\nv_cndmask_b32 v{vPr[5]}, v{t[1]}, v{t[2]}, vcc')
    a(f'v_mov_b32 v{t[0]}, 0xeeee\nv_mov_b32 v{t[1]}, 0x4444\nv_cndmask_b32 v{vIdx}, v{t[0]}, v{t[1]}, vcc')
    sHB = 54
    a(f's_mov_b64 s[{sHB}:{sHB+1}], vcc\nv_and_b32 v{t[2]}, 1, v{vL}\nv_cmp_eq_u32 vcc, 0, v{t[2]}\ns_nop 1\nv_cndmask_b32 v{vIdxM}, v{t[0]}, v{t[1]}, vcc')
    a(f'v_and_b32 v{t[0]}, 1, v{vI}\nv_lshlrev_b32 v{t[0]}, 4, v{t[0]}\nv_mov_b32 v{t[1]}, 0x3f80\nv_lshlrev_b32 v{t[1]}, v{t[0]}, v{t[1]}\nv_lshrrev_b32 v{t[0]}, 1, v{vI}')
    for u in range(4):
        a(f'v_cmp_eq_u32 vcc, {u}, v{t[0]}\nv_mov_b32 v{vOneT+u}, 0x3f803f80\nv_mov_b32 v{vSent+u}, -1\nv_cndmask_b32 v{vSel+u}, 0, v{t[1]}, vcc')
    a(f'v_cmp_gt_u32 vcc, 2, v{vG}\nv_mov_b32 v{vOneM+2}, 0\nv_mov_b32 v{vOneM+3}, 0\nv_cndmask_b32 v{vOneM}, 0, v{vOneT}, vcc\nv_cndmask_b32 v{vOneM+1}, 0, v{vOneT}, vcc')
    for r in (vBlo+6, vBlo+7, vBhi+6, vBhi+7): a(f'v_mov_b32 v{r}, 0')
    for b in range(4): a(f'v_mov_b32 v{vWm+4*b+2}, 0\nv_mov_b32 v{vWm+4*b+3}, 0')
    cl = struct.unpack('<I', struct.pack('<f', (128**-0.5)*math.log2(math.e)))[0]
    a(f's_mov_b32 s{sCl}, {cl:#x}\ns_mov_b32 s{sTO}, {1<<22}')
    a(f'v_lshlrev_b32 v{t[3]}, 11, v{vI}\nv_and_b32 v{t[0]}, 1, v{vG}\nv_lshl_add_u32 v{t[3]}, v{t[0]}, 3, v{t[3]}\nv_lshl_add_u32 v{t[3]}, v{vHB}, 2, v{t[3]}\ns_lshl_b32 s{sT[1]}, s{sJ}, 4\nv_add_u32 v{t[3]}, s{sT[1]}, v{t[3]}')
    mC = a.newlab(name+'_p')
    a(f'v_and_b32 v{t[4]}, 0x28, v{vL}')
    for i in range(NP):
        a(f's_waitcnt vmcnt({8*min(3, NP-1-i)})'); wread(i)
        if i+4 < NP: wdma(i+4)
    if verify: verify(a)
    l2 = a.newlab(name+'_p')
    a(f's_cmp_eq_u32 s{sW}, 2\ns_cbranch_scc0 {l2}')
    a(f'v_lshrrev_b32 v{t[0]}, 4, v{vL}\nv_lshlrev_b32 v{t[0]}, 10, v{t[0]}\nv_and_b32 v{t[1]}, 15, v{vL}\nv_lshl_add_u32 v{vAw}, v{t[1]}, 4, v{t[0]}')
    a(f's_lshl_b32 s{sT[1]}, s{sSlot}, 12\ns_lshl_b32 s{sT[2]}, s{sX}, 8\ns_add_u32 s{sT[1]}, s{sT[1]}, s{sT[2]}\nv_add_u32 v{vAw}, s{sT[1]}, v{vAw}')
    nearmap(vAw)
    a(f's_lshl_b32 s{sT[1]}, s{sSlot}, 9\ns_add_u32 s{sT[1]}, s{sT[1]}, s{sT[4]}\nv_add_u32 v{vAw2}, s{sT[1]}, v{vL16}\nv_cmp_gt_u32 vcc, 32, v{vL}\ns_nop 1\nv_cndmask_b32 v{vAw2}, v{t[5]}, v{vAw2}, vcc')
    a.lab(l2)
    assert not cmulti
    nearmap(vCrd); nearmap(vCwr)
    if c2: a(f'v_cmp_gt_u32 vcc, 32, v{vL}\ns_nop 1\nv_cndmask_b32 v{vCwr}, v{t[5]}, v{vCwr}, vcc')
    else: a(f'v_cmp_eq_u32 vcc, 0, v{t[4]}\ns_nop 1\nv_cndmask_b32 v{vCwr}, v{t[5]}, v{vCwr}, vcc')
    a(f's_load_dwordx2 s[{SRD_IN}:{SRD_IN+1}], s[0:1], 8\ns_mov_b32 s{SRD_IN+2}, 16384\ns_waitcnt lgkmcnt(0)\nbuffer_load_dword v{vOut}, v{t[3]}, {IND}, 0 offen')
    a('s_barrier')
    if light: a('s_memrealtime s[82:83]')
    a(f'v_mov_b32 v{t[0]}, 0\nv_mov_b32 v{t[1]}, {LDS_Z}\nds_write_b32 v{t[1]}, v{t[0]}\nds_write_b32 v{t[1]}, v{t[0]} offset:4')
    a(f's_mov_b32 s{sD[0]}, 0\ns_mov_b32 s{sD[1]}, 16384\ns_mov_b32 s{sD[2]}, 32768')
    a(f's_mov_b32 s{sA[0]}, 0\ns_mov_b32 s{sA[1]}, {32*8192}\ns_mov_b32 s{sA[2]}, {64*8192}')
    a(f's_mov_b32 s{sB[0]}, 0\ns_mov_b32 s{sB[1]}, 131072\ns_mov_b32 s{sB[2]}, 262144')
    if cmulti:
        a(f's_mov_b32 s{sCr[0]}, 0\ns_mov_b32 s{sCr[1]}, {MBY}\ns_lshl_b32 s{sT[0]}, s{sPar}, 14\ns_sub_u32 s{sCr[2]}, {2*MBY+8192}, s{sT[0]}')
    elif c2: a(f's_mov_b32 s{sCr[0]}, 0\ns_mov_b32 s{sCr[1]}, 524288\ns_mov_b32 s{sCr[2]}, 1048576')
    else: a(f's_mov_b32 s{sCr[0]}, 0\ns_mov_b32 s{sCr[1]}, 262144\ns_mov_b32 s{sCr[2]}, 524288')
    a(f's_mov_b32 s{sStep}, 0\ns_mov_b32 s{sKM}, 0')
    a(f's_waitcnt vmcnt(0)\nbuffer_store_dword v{vOut}, v{vDwr}, {WSD}, 0 offen{LS}')

    sVt = sXn
    def dma_tok(part, sTok=sTok):
        L = []
        for cc in range(4):
            L.append(f's_add_u32 m0, s{sTok}, {(part*4+cc)*1024}\ns_add_u32 s{sT[0]}, s{sVt}, {cc*M*64 + part*1024}\nbuffer_load_dwordx4 v{vVt}, {WSD}, s{sT[0]} offen{ksc} lds')
        L.append(f's_add_u32 m0, s{sTok}, {(8+part)*1024}\ns_add_u32 s{sT[0]}, s{sVt}, {part*1024}\nbuffer_load_dwordx4 v{vKt}, {WSD}, s{sT[0]} offen{ksc} lds')
        return L
    def read_tok():
        a(f'v_add_u32 v{t[3]}, s{sTok}, v{vL16}')
        for f in range(8): a(f'ds_read_b128 {vr(vVtf+f*4,4)}, v{t[3]} offset:{f*1024}')
        for f in range(2): a(f'ds_read_b128 {vr(vKtf+f*4,4)}, v{t[3]} offset:{(8+f)*1024}')
    def vwtok_list():
        L = []
        for b in range(4):
            for tb in range(2):
                for cc in range(4):
                    D = vr(accT+(b*2+tb)*4,4)
                    L.append(f'v_mfma_f32_16x16x32_bf16 {D}, {vr(vVtf+(tb*4+cc)*4,4)}, {ar(aO(cc>>1,b)+(cc&1)*4,4)}, {D if cc else 0}')
            if b: L[-1] += '\n' + vwcvt(b-1)
        return L
    vwcvt = lambda b: '\n'.join(f'v_cvt_pk_bf16_f32 v{vWt+b*4+tb*2+k}, v{accT+(b*2+tb)*4+2*k}, v{accT+(b*2+tb)*4+2*k+1}' for tb in range(2) for k in range(2))
    zl = [f'v_mov_b32 v{acc+r}, 0' for r in range(24)] + [f'v_mov_b32 v{accW+r}, 0' for r in range(16)]
    sFl = sPf
    if kvflags:
        a(f's_lshl_b32 s{sFl}, s{sH}, 3\ns_add_u32 s{sFl}, s{sFl}, {TAB_KV}\nv_mov_b32 v{t[1]}, 0')
        lf, lg = a.newlab(name+'_p'), a.newlab(name+'_p')
        a.lab(lf)
        a(f'buffer_load_dwordx2 {vr(vFl,2)}, v{t[1]}, {WSD}, s{sFl} offen sc1\ns_waitcnt vmcnt(0)')
        a(f'v_max_u32 v{t[0]}, v{vFl}, v{vFl+1}\nv_cmp_eq_u32 vcc, -1, v{t[0]}\ns_cbranch_vccz {lg}')
        fail_check(); a(f's_sleep 2\ns_branch {lf}')
        a.lab(lg)
    lq = a.newlab(name+'_p')
    a(f's_lshl_b32 s{sVt}, s{sW}, 11\ns_mul_i32 s{sTok}, s{sW}, 10240\ns_add_u32 s{sTok}, s{sTok}, {LDS_TOK}\ns_cmp_gt_u32 s{sW}, 1\ns_cbranch_scc1 {lq}')
    for x in dma_tok(0) + dma_tok(1): a(x)
    a.lab(lq)
    a(f's_mov_b32 s{sTok}, {LDS_TOK}\ns_waitcnt vmcnt(0) lgkmcnt(0)\ns_barrier')
    read_tok(); a('s_waitcnt lgkmcnt(0)')
    for x in vwtok_list(): a(x)
    a('s_nop 7'); a(vwcvt(3))
    a(f's_mov_b32 s{sVt}, 4096\ns_mov_b32 s{sTok}, {LDS_TOK+10240}')
    for x in zl: a(x)

    LOOP = name+'_loop'
    if light: a('s_memrealtime s[84:85]\ns_memtime s[88:89]')
    a('.p2align 6'); a.lab(LOOP)
    stamp(0)
    if stamps: a('s_mov_b32 s72, 0\ns_mov_b32 s73, 0\ns_mov_b32 s74, 0\ns_mov_b32 s75, 0')
    dload = lambda k: f'buffer_load_dwordx4 {vr(vMem+4*k,4)}, v{vDrd}, {WSD}, s{sD[0]} offen offset:{k*1024} sc1'
    for _ in range(dgap): a('s_nop 15')
    for k in range(4): a(dload(k))
    def sm(blk, ks):
        return f'v_smfmac_f32_16x16x64_bf16 {vr(acc+4*blk,4)}, {vr(vMem+4*ks,4)}, {ar(aW(blk>>1,ks,blk&1),8)}, v{vIdxM}'
    XD = []
    a.lab(f'{name}_dp0'); a('s_waitcnt vmcnt(3)')
    for x in chk4(vMem, t[0]): a(x)
    a(f's_cbranch_vccnz {name}_dr0')
    if not ackt: stamp(7, 3)
    nx = 0
    for k in range(4):
        a.lab(f'{name}_dm{k}')
        a(sm(0,k)); a(sm(1,k))
        if k < 3:
            c = chk4(vMem+4*(k+1), t[0])
            a(f's_waitcnt vmcnt({2-k})'); a(c[0]); a(sm(2,k)); a(c[1]); a(c[2]); a(sm(3,k)); a(f's_cbranch_vccnz {name}_dr{k+1}')
        else:
            stamp(1); stamp(1, 3); a(XD[0] if XD else ''); a(sm(2,k)); a(sm(3,k))
    vs = [sm(4+eb, ks) for ks in range(4) for eb in range(2)]
    ha = lambda b: f'v_add_f32 v{acc+4*b}, v{acc+4*b}, v{acc+4*b+1}\nv_add_f32 v{acc+4*b+2}, v{acc+4*b+2}, v{acc+4*b+3}'
    w5 = lambda b: f'ds_write2_b32 v{vLw[b]}, v{acc+4*b}, v{acc+4*b+2} offset0:0 offset1:{RS//4}'
    for x in [vs[0], vs[1], vs[2], vs[3], 's_nop 0', ha(0), vs[4], w5(0), ha(1), vs[5], w5(1), ha(2), vs[6], w5(2), ha(3), vs[7], w5(3), 's_nop 4', ha(4), w5(4), ha(5), w5(5)]: a(x)
    stamp(1, 2)
    a('s_waitcnt lgkmcnt(0)\ns_barrier')
    stamp(2); stamp(2, 2); stamp(1, 1)
    def rearm(pos, wv=None):
        A = f'buffer_store_dwordx4 {vr(vSent,4)}, v{vAw}, {WSD}, s{sA[2]} offen{LS}\nbuffer_store_dwordx4 {vr(vSent,4)}, v{vAw2}, {WSD}, s{sA[2]} offen{LS}' if ra == pos else ''
        O = ''
        if rc == pos:
            O += f'buffer_store_dwordx4 {vr(vSent,4)}, v{vAw}, {WSD}, s{sCr[1]} offen sc1\n'
            if c2: O += f's_add_u32 s{sT[0]}, s{sCr[1]}, 262144\nbuffer_store_dwordx4 {vr(vSent,4)}, v{vAw}, {WSD}, s{sT[0]} offen sc1\n'
        if rb == pos:
            O += f'buffer_store_dwordx4 {vr(vSent,4)}, v{vAw2}, {WSD}, s{sD[2]} offen{LS}\nv_subrev_u32 v{t[0]}, 16384, v{vBwr}\n'
            for k in range(4): O += f's_add_u32 s{sT[0]}, s{sB[2]}, {k*8192}\nbuffer_store_dwordx4 {vr(vSent,4)}, v{t[0]}, {WSD}, s{sT[0]} offen{LS}\n'
        if wv == 0: a(A); return
        if wv == 2: a(O); return
        if A:
            l = a.newlab(name+'_n'); a(f's_cmp_gt_u32 s{sW}, 1\ns_cbranch_scc1 {l}'); a(A); a.lab(l)
        if O:
            l = a.newlab(name+'_n'); a(f's_cmp_eq_u32 s{sW}, 2\ns_cbranch_scc0 {l}'); a(O); a.lab(l)
    W1, W2, W3, F3L = name+'_w1', name+'_w2', name+'_w3', name+'_f3'
    a(f's_cmp_eq_u32 s{sW}, 0\ns_cbranch_scc0 {W1}')
    for wv in range(4):
        for k in range(2): a(f'ds_read_b128 {vr(vX+(wv*2+k)*4,4)}, v{vLr} offset:{wv*WSTR+k*16}')
    a('s_waitcnt lgkmcnt(4)')
    for r in range(0, 8, 2): a(pk(vX+r, vX+r, vX+8+r))
    a('s_waitcnt lgkmcnt(0)')
    for r in range(0, 8, 2): a(pk(vX+16+r, vX+16+r, vX+24+r))
    for r in range(0, 8, 2): a(pk(vX+r, vX+r, vX+16+r))
    for r in range(4): a(f'v_cvt_pk_bf16_f32 v{vXo+r}, v{vX+2*r}, v{vX+2*r+1}')
    a('s_nop 1')
    mf(vS+4, vKtf+4, vXo, 0); mf(vS, vKtf, vXo, 0); mf(vS+8, vXo, vXo, 0)
    a('s_nop 6')
    for r in range(4): a(f'v_mov_b32_dpp v{vS+r}, v{vS+4+r} row_ror:8 row_mask:0xf bank_mask:0xc')
    a(f'buffer_store_dwordx4 {vr(vS,4)}, v{vAw}, {WSD}, s{sA[0]} offen{LS}\nbuffer_store_dwordx4 {vr(vS+8,4)}, v{vAw2}, {WSD}, s{sA[0]} offen{LS}')
    stamp(2, 1); stamp(2, 3)
    rearm('pub', 0); a(f's_branch {F3L}')
    a.lab(W1)
    a(vpart); a('s_waitcnt lgkmcnt(0)\ns_barrier')
    a(f's_cmp_eq_u32 s{sW}, 3\ns_cbranch_scc1 {F3L}\ns_cmp_eq_u32 s{sW}, 2\ns_cbranch_scc1 {W2}')
    for wv in range(2):
        for k in range(2): a(f'ds_read_b128 {vr(vX+(wv*2+k)*4,4)}, v{vLr} offset:{wv*2*WSTR+k*16}')
    def vsum():
        a('s_waitcnt lgkmcnt(0)')
        for r in range(0, 8, 2): a(pk(vX+r, vX+r, vX+8+r))
        for r in range(8): a(f'v_add_f32_dpp v{vX+8+r}, v{vX+r}, v{vX+r} {DPP8}')
        for r in range(4): a(f'v_cvt_pk_bf16_f32 v{vXo+r}, v{vX+8+2*r}, v{vX+9+2*r}')
    vsum()
    a(f'buffer_store_dwordx4 {vr(vXo,4)}, v{vAw}, {WSD}, s{sA[0]} offen{LS}')
    stamp(2, 1); stamp(2, 3)
    rearm('pub', 0); a(f's_branch {F3L}')
    a.lab(W2)
    rearm('b1', 2)
    for wv in range(2):
        for k in range(4): a(f'ds_read_b64 {vr(vX+wv*8+2*k,2)}, v{vLr} offset:{wv*2*WSTR+(k&1)*32+(k>>1)*8}')
    vsum()
    a.lab(F3L)
    LAST = name+'_last'
    a(f's_cmp_eq_u32 s{sStep}, {nsteps}\ns_cbranch_scc1 {LAST}')
    a(f's_add_u32 s{sA2}, s{sA[0]}, 4096')
    vld = lambda R: f'buffer_load_dwordx4 {vr(R,4)}, v{vAvr}, {WSD}, s{sA[0]} offen sc1\nbuffer_load_dwordx4 {vr(R+4,4)}, v{vAvr}, {WSD}, s{sA2} offen sc1'
    sld = lambda R: (f'buffer_load_dwordx4 {vr(R,4)}, v{vAsr}, {WSD}, s{sA[0]} offen sc1\nbuffer_load_dwordx4 {vr(R+4,4)}, v{vAsr}, {WSD}, s{sA[0]} offen offset:2048 sc1\n'
              f'buffer_load_dwordx4 {vr(R+8,4)}, v{vAsr}, {WSD}, s{sA2} offen sc1\nbuffer_load_dwordx4 {vr(R+12,4)}, v{vAsr}, {WSD}, s{sA2} offen offset:2048 sc1\n'
              f'buffer_load_dwordx4 {vr(R+16,4)}, v{vAmr}, {WSD}, s{sA[0]} offen sc1\nbuffer_load_dwordx4 {vr(R+20,4)}, v{vAmr}, {WSD}, s{sA2} offen sc1')
    vwm = [f'v_smfmac_f32_16x16x64_bf16 {vr(accW+4*b,4)}, {vr(vVm+4*n2,4)}, {ar(aO(n2,b),8)}, v{vIdx}' for n2 in range(2) for b in range(4)]
    vwc = [f'v_cvt_pk_bf16_f32 v{vWm+4*b+k}, v{accW+4*b+2*k}, v{accW+4*b+2*k+1}' for b in range(4) for k in range(2)]
    B2 = name+'_b2'; FIN = name+'_fin'
    a(f's_cmp_eq_u32 s{sW}, 3\ns_cbranch_scc1 {W3}')
    assert amode == 0
    a(f's_barrier\nds_read_b128 {vr(vVm,4)}, v{vPw} offset:{LDS_V-LDS_P}\nds_read_b128 {vr(vVm+4,4)}, v{vPw} offset:{LDS_V-LDS_P+1024}')
    if kvflags:
        a.lab(name+'_kf')
        a(f'v_max_u32 v{t[0]}, v{vFl}, v{vFl+1}\nv_cmp_eq_u32 vcc, -1, v{t[0]}\ns_cbranch_vccnz {name}_kfr')
    a(f's_sub_u32 s{sT[3]}, {2*LDS_TOK+10240}, s{sTok}')
    TD = dma_tok(0, sT[3]) + dma_tok(1, sT[3])
    le = a.newlab(name+'_n')
    for wv, idx in enumerate(((0,1,2), (3,4,5), (6,7,8,9))):
        lt = a.newlab(name+'_n')
        if wv < 2: a(f's_cmp_eq_u32 s{sW}, {wv}\ns_cbranch_scc0 {lt}')
        for k in idx: a(TD[k])
        if wv < 2: a(f's_branch {le}'); a.lab(lt)
    a.lab(le)
    a('s_waitcnt lgkmcnt(0)')
    for x in vwm: a(x)
    rearm('bv')
    preads = (f'ds_read_b64 {vr(vBlo,2)}, v{vPr[0]}\nds_read_b64 {vr(vBlo+2,2)}, v{vPr[1]}\nds_read_b64 {vr(vBlo+4,2)}, v{vPr[2]}\n'
              f'ds_read_b64 {vr(vBhi,2)}, v{vPr[3]}\nds_read_b64 {vr(vBhi+2,2)}, v{vPr[4]}\nds_read_b64 {vr(vBhi+4,2)}, v{vPr[5]}')
    a('s_waitcnt lgkmcnt(0)'); stamp(6, 1); a('s_barrier'); stamp(5); stamp(7, 1)
    a(preads)
    for x in vwc: a(x)
    a('s_waitcnt lgkmcnt(3)')
    mf(vLs, vOneT, vBlo, 0); mf(vLs, vOneM, vBlo+4, 1)
    mf(vF, vWt, vBlo, 0); mf(vF+4, vWt+4, vBlo, 0); mf(vF, vWm, vBlo+4, 1); mf(vF+4, vWm+4, vBlo+4, 1)
    a('s_waitcnt lgkmcnt(0)')
    mf(vF, vWt+8, vBhi, 1); mf(vF+4, vWt+12, vBhi, 1)
    a(f's_branch {FIN}')
    a.lab(W3)
    def schk(R, Rv):
        for k in range(4): a(f'v_max3_u32 v{t[k]}, v{R+6*k}, v{R+6*k+1}, v{R+6*k+2}')
        for k in range(4): a(f'v_max3_u32 v{t[k]}, v{t[k]}, v{R+6*k+3}, v{R+6*k+4}')
        a(f'v_max3_u32 v{t[0]}, v{t[0]}, v{R+5}, v{R+11}\nv_max3_u32 v{t[1]}, v{t[1]}, v{R+17}, v{R+23}')
        if Rv is not None:
            a(f'v_max3_u32 v{t[2]}, v{t[2]}, v{Rv}, v{Rv+1}\nv_max3_u32 v{t[3]}, v{t[3]}, v{Rv+2}, v{Rv+3}\nv_max3_u32 v{t[0]}, v{t[0]}, v{Rv+4}, v{Rv+5}\nv_max3_u32 v{t[1]}, v{t[1]}, v{Rv+6}, v{Rv+7}')
        a(f'v_max3_u32 v{t[0]}, v{t[0]}, v{t[2]}, v{t[3]}\nv_max_u32 v{t[0]}, v{t[0]}, v{t[1]}\nv_cmp_eq_u32 vcc, -1, v{t[0]}')
    def smx_head(R):
        a(pk(R+16, R+16, R+20)); a(pk(R+18, R+18, R+22))
        for r in (0, 2): a(pk(R+r, R+r, R+4+r)); a(pk(R+8+r, R+8+r, R+12+r))
        for r in range(4): a(f'v_add_f32_dpp v{R+4+r}, v{R+16+r}, v{R+16+r} {DPP8}')
        for r in (0, 2): a(pk(R+r, R+r, R+8+r))
    def smx_tail(R):
        a(f'v_max3_f32 v{t[0]}, v{R+4}, v{R+5}, v{R+6}\nv_max3_f32 v{t[0]}, v{t[0]}, v{R+7}, v{R}\nv_max3_f32 v{t[0]}, v{t[0]}, v{R+1}, v{R+2}\nv_max_f32 v{t[0]}, v{t[0]}, v{R+3}')
        a(f's_nop 1\nv_max_f32_dpp v{t[0]}, v{t[0]}, v{t[0]} {DPP8}')
        a(f'v_mov_b32 v{t[1]}, v{t[0]}\ns_nop 1\nv_permlane16_swap_b32 v{t[0]}, v{t[1]}\nv_max_f32 v{t[0]}, v{t[0]}, v{t[1]}')
        a(f'v_mov_b32 v{t[1]}, v{t[0]}\ns_nop 1\nv_permlane32_swap_b32 v{t[0]}, v{t[1]}\nv_max_f32 v{t[0]}, v{t[0]}, v{t[1]}')
        a(f'v_mul_f32 v{t[0]}, s{sCl}, v{t[0]}')
        for r in range(8): a(f'v_fma_f32 v{R+r}, v{R+r}, s{sCl}, -v{t[0]}')
        for r in range(8): a(f'v_exp_f32 v{R+r}, v{R+r}')
        a('s_nop 0')
        for r in range(4): a(f'v_cvt_pk_bf16_f32 v{vXo+r}, v{R+2*r}, v{R+2*r+1}')
        a(f'ds_write_b128 v{vPw}, {vr(vXo,4)}')
    sets = [(vX, vX+24), (vVtf, vVtf+24)][:ns]
    for _ in range(s0): a('s_nop 15')
    for k, (R, Rv) in enumerate(sets):
        if k:
            for _ in range(sgap): a('s_nop 15')
        a(sld(R)); a(vld(Rv))
    a.lab(name+'_sp')
    for k, (R, Rv) in enumerate(sets):
        a(f's_waitcnt vmcnt({8*(ns-1)})'); schk(R, Rv)
        a(f's_cbranch_vccz {name}_sg{k}')
        a(sld(R)); a(vld(Rv)); fail_check(1)
    a(f's_branch {name}_sp')
    for k, (R, Rv) in enumerate(sets):
        a.lab(f'{name}_sg{k}')
        stamp(4); stamp(5, 1); stamp(2, 3)
        if amode == 0:
            a(f'ds_write_b128 v{vPw}, {vr(Rv,4)} offset:{LDS_V-LDS_P}\nds_write_b128 v{vPw}, {vr(Rv+4,4)} offset:{LDS_V-LDS_P+1024}')
        smx_head(R)
        for r in range(8): a(f'v_mov_b32 v{vVm+r}, v{Rv+r}') if False else None
        if amode == 0: a('s_waitcnt lgkmcnt(0)\ns_barrier')
        vwm3 = [f'v_smfmac_f32_16x16x64_bf16 {vr(accW+4*b,4)}, {vr(Rv+4*n2,4)}, {ar(aO(n2,b),8)}, v{vIdx}' for n2 in range(2) for b in range(4)]
        smx_tail(R)
        for x in vwm3[:3]: a(x)
        a('s_waitcnt lgkmcnt(0)'); stamp(6, 1); a('s_barrier'); stamp(5); stamp(7, 1)
        a(preads)
        for x in vwm3[3:]: a(x)
        if k < ns-1: a(f's_branch {name}_sj')
    a.lab(name+'_sj')
    a('s_waitcnt lgkmcnt(3)')
    mf(vLs, vOneT, vBlo, 0); mf(vLs, vOneM, vBlo+4, 1); mf(vF, vWt, vBlo, 0); mf(vF+4, vWt+4, vBlo, 0)
    a('s_waitcnt vmcnt(0) lgkmcnt(0)')
    mf(vF, vWt+8, vBhi, 1); a(vwc[0]); a(vwc[1]); mf(vF+4, vWt+12, vBhi, 1); a(vwc[2]); a(vwc[3]); a(vwc[4]); a(vwc[5])
    mf(vF, vWm, vBlo+4, 1); a(vwc[6]); a(vwc[7]); mf(vF+4, vWm+4, vBlo+4, 1)
    a.lab(FIN)
    a(f's_nop 0\nv_rcp_f32 v{t[0]}, v{vLs}')
    mf(vF, vWm+8, vBhi+4, 1); mf(vF+4, vWm+12, vBhi+4, 1)
    a(f's_nop 0\nv_mov_b32_dpp v{t[0]}, v{t[0]} row_ror:8 row_mask:0xf bank_mask:0xc\ns_nop 4')
    for r in range(0, 8, 2):
        a(f'v_mul_f32 v{vF+r}, v{vF+r}, v{t[0]}\nv_mul_f32 v{vF+r+1}, v{vF+r+1}, v{t[0]}\nv_cvt_pk_bf16_f32 v{vOut+r//2}, v{vF+r}, v{vF+r+1}')
    a(f'buffer_store_dwordx4 {vr(vOut,4)}, v{vBwr}, {WSD}, s{sB[0]} offen{LS}')
    stamp(6); stamp(3, 2); stamp(3, 3)
    bld = lambda k: f'buffer_load_dwordx4 {vr(vRd+4*k,4)}, v{vBrd}, {WSD}, s{sB[0]} offen sc1'
    read_tok()
    for k in range(nb):
        if zpos == 0 and k:
            for x in zl[(k-1)*40//(nb-1):k*40//(nb-1)]: a(x)
        else:
            for _ in range(b0 if k == 0 else bgap): a('s_nop 15')
        a(bld(k))
    a.lab(name+'_hb')
    for k in range(nb):
        a(f's_waitcnt vmcnt({nb-1})')
        mf(vRa, vSel, vRd+4*k, 0)
        for x in chk4(vRd+4*k, t[0]): a(x)
        a(f's_cbranch_vccz {name}_hbd')
        a(bld(k)); fail_check(2)
    a(f's_branch {name}_hb')
    a.lab(name+'_hbd')
    a('s_nop 3')
    for r in range(4): a(f'v_add_f32_dpp v{vOut+r}, v{vRa+r}, v{vRa+r} {DPP8}')
    a(f'buffer_store_dwordx4 {vr(vOut,4)}, v{vCwr}, {WSD}, s{sCr[0]} offen sc1')
    stamp(3); stamp(4, 2); stamp(4, 3)
    if ackt: a('s_waitcnt vmcnt(0)'); stamp(7, 3)
    a(f's_waitcnt lgkmcnt(0)\ns_sub_u32 s{sTok}, {2*LDS_TOK+10240}, s{sTok}')
    flload = (f's_add_u32 s{sT[0]}, s{sStep}, 3\ns_and_b32 s{sT[1]}, s{sT[0]}, 0x34\ns_lshr_b32 s{sT[0]}, s{sT[0]}, 3\ns_cmp_eq_u32 s{sT[1]}, 4\ns_cselect_b32 s{sT[1]}, 8, 0\n'
              f's_add_u32 s{sT[0]}, s{sT[0]}, s{sT[1]}\ns_lshl_b32 s{sT[0]}, s{sT[0]}, 8\ns_add_u32 s{sT[0]}, s{sT[0]}, s{sFl}\nv_mov_b32 v{t[1]}, 0\nbuffer_load_dwordx2 {vr(vFl,2)}, v{t[1]}, {WSD}, s{sT[0]} offen sc1')
    def aux():
        if tokbv:
            if 'k' not in abl: a(f'buffer_store_dwordx4 {vr(vXo,4)}, v{vKMw}, {WSD}, s{sKM} offen{ksc}')
            return
        a(f's_lshl_b32 s{sT[1]}, s{sW}, 10\ns_add_u32 s{sT[2]}, s{sT[1]}, s{sTok}\ns_mov_b32 m0, s{sT[2]}\ns_lshl_b32 s{sT[0]}, s{sW}, 17\ns_add_u32 s{sT[0]}, s{sT[0]}, s{sVt}')
        a(f'buffer_load_dwordx4 v{vVt}, {WSD}, s{sT[0]} offen{ksc} lds\ns_add_u32 m0, s{sT[2]}, 3072\ns_add_u32 s{sT[1]}, s{sT[1]}, s{sVt}')
        a(f'buffer_load_dwordx4 v{vVt}, {WSD}, s{sT[0]} offen offset:1024{ksc} lds\ns_add_u32 m0, s{sT[2]}, 8192\ns_cmp_gt_u32 s{sW}, 1\ns_cselect_b32 s{sT[1]}, {OOB}, s{sT[1]}')
        a(f's_cselect_b32 m0, {LDS_V+2048}, m0\ns_nop 0\nbuffer_load_dwordx4 v{vKt}, {WSD}, s{sT[1]} offen{ksc} lds')
        a(f'buffer_store_dwordx4 {vr(vXo,4)}, v{vKMw}, {WSD}, s{sKM} offen{ksc}')
    cloads = f'buffer_load_dwordx4 {vr(vRd,4)}, v{vCrd}, {WSD}, s{sCr[0]} offen sc1\nbuffer_load_dwordx4 {vr(vRd+4,4)}, v{vCrd}, {WSD}, s{sCr[0]} offen offset:512 sc1'
    VL = vwtok_list()
    cl2 = f's_add_u32 s{sT[5]}, s{sCr[0]}, 262144\nbuffer_load_dwordx4 {vr(vRd+8,4)}, v{vCrd}, {WSD}, s{sT[5]} offen sc1\nbuffer_load_dwordx4 {vr(vRd+12,4)}, v{vCrd}, {WSD}, s{sT[5]} offen offset:512 sc1'
    if not late: rearm('cw'); aux()
    for k, x in enumerate(VL):
        if c2 and k == cpos0: a(cl2)
        if k == cpos: a(cloads)
        a(x)
    if cpos >= len(VL): a(cloads)
    nafter = 0
    if kvflags: a(flload); nafter = 1
    a(f's_add_u32 s{sVt}, s{sVt}, 2048')
    for s_ in (sA, sB):
        a(f's_mov_b32 s{sT[0]}, s{s_[0]}\ns_mov_b32 s{s_[0]}, s{s_[1]}\ns_mov_b32 s{s_[1]}, s{s_[2]}\ns_mov_b32 s{s_[2]}, s{sT[0]}')
    a(f's_mov_b32 s{sT[0]}, s{sD[0]}\ns_mov_b32 s{sD[0]}, s{sD[1]}\ns_mov_b32 s{sD[1]}, s{sD[2]}\ns_mov_b32 s{sD[2]}, s{sT[0]}')
    a(f's_add_u32 s{sStep}, s{sStep}, 1\ns_add_u32 s{sKM}, s{sKM}, 512')
    a(vwcvt(3))
    stamp(5, 2)
    if c2:
        a('s_waitcnt vmcnt(2)')
        a(chk8(vRd+8)); a(pk(vRa, vRd+8, vRd+12)); a(pk(vRa+2, vRd+10, vRd+14))
        a(f's_cbranch_vccz {name}_hd')
    a(f's_waitcnt vmcnt({nafter})')
    a.lab(name+'_hc')
    a(chk8(vRd)); a(pk(vRa, vRd, vRd+4)); a(pk(vRa+2, vRd+2, vRd+6))
    a(f's_cbranch_vccnz {name}_hcr')
    a.lab(name+'_hd')
    stamp(7); stamp(6, 2); stamp(5, 3)
    for r in range(4): a(f'v_add_f32_dpp v{vS+r}, v{vRa+r}, v{vRa+r} {DPP8}')
    a(f'v_cvt_pk_bf16_f32 v{vOut}, v{vS}, v{vS+1}\nv_cvt_pk_bf16_f32 v{vOut+1}, v{vS+2}, v{vS+3}\nv_cndmask_b32 v{vOut}, v{vOut+1}, v{vOut}, s[{sHB}:{sHB+1}]')
    a(f'buffer_store_dword v{vOut}, v{vDwr}, {WSD}, s{sD[0]} offen{LS}')
    stamp(6, 3)
    if late: rearm('cw'); aux()
    if zpos == 1:
        for x in zl: a(x)
    a(f's_mov_b32 s{sT[0]}, s{sCr[0]}\ns_mov_b32 s{sCr[0]}, s{sCr[1]}\ns_mov_b32 s{sCr[1]}, s{sCr[2]}\ns_mov_b32 s{sCr[2]}, s{sT[0]}')
    if stamps:
        a('s_waitcnt lgkmcnt(0)')
        for k in range(8): a(f'v_writelane_b32 v{t[2]}, s{sStamp+2*k}, {k}')
        a(f's_memrealtime s[76:77]\ns_waitcnt lgkmcnt(0)')
        for k in range(5): a(f'v_writelane_b32 v{t[2]}, s{72+k}, {8+k}')
        a(f's_lshl_b32 s{sT[0]}, s{sX}, 5\ns_add_u32 s{sT[0]}, s{sT[0]}, s{sSlot}\ns_lshl_b32 s{sT[0]}, s{sT[0]}, 2\ns_add_u32 s{sT[0]}, s{sT[0]}, s{sW}\ns_lshl_b32 s{sT[0]}, s{sT[0]}, 6\ns_add_u32 s{sT[0]}, s{sT[0]}, s{sStep}\ns_sub_u32 s{sT[0]}, s{sT[0]}, 1\ns_lshl_b32 s{sT[0]}, s{sT[0]}, 6\ns_add_u32 s{sT[0]}, s{sT[0]}, {OFF_STAMP}')
        a(f'v_lshlrev_b32 v{t[3]}, 2, v{vL}\nv_mov_b32 v{t[4]}, {OOB}\nv_cmp_gt_u32 vcc, 16, v{vL}\ns_nop 1\nv_cndmask_b32 v{t[3]}, v{t[4]}, v{t[3]}, vcc')
        a(f'buffer_store_dword v{t[2]}, v{t[3]}, {WSD}, s{sT[0]} offen')
    a(f's_branch {LOOP}')
    for k in range(4):
        a.lab(f'{name}_dr{k}'); fail_check(0)
        for kk in range(k, 4): a(dload(kk))
        if k == 0: a(f's_branch {name}_dp0')
        else:
            a(f's_waitcnt vmcnt({3-k})')
            for x in chk4(vMem+4*k, t[0]): a(x)
            a(f's_cbranch_vccnz {name}_dr{k}\ns_branch {name}_dm{k}')
    a.lab(name+'_hcr'); fail_check(3); a(cloads); a(f's_waitcnt vmcnt(0)\ns_branch {name}_hc')
    if amode: a.lab(name+'_vr'); fail_check(1); a(vld(vVm)); a(f's_branch {name}_vp')
    if kvflags:
        a.lab(name+'_kfr'); fail_check(1)
        a(flload.replace(f's{sStep}, 3', f's{sStep}, 2')); a(f's_waitcnt vmcnt(0)\ns_branch {name}_kf')
    a.lab(LAST)
    a(f'buffer_store_dwordx4 {vr(vXo,4)}, v{vKMw}, {WSD}, s{sKM} offen{ksc}')
    if light:
        a('s_memrealtime s[86:87]\ns_memtime s[90:91]\ns_waitcnt lgkmcnt(0)\ns_sub_u32 s90, s90, s88')
        for k, r in enumerate((80,82,84,86,90)): a(f'v_writelane_b32 v{t[2]}, s{r}, {k}')
        a(f's_lshl_b32 s{sT[0]}, s{sX}, 5\ns_add_u32 s{sT[0]}, s{sT[0]}, s{sSlot}\ns_lshl_b32 s{sT[0]}, s{sT[0]}, 2\ns_add_u32 s{sT[0]}, s{sT[0]}, s{sW}\ns_lshl_b32 s{sT[0]}, s{sT[0]}, 6\ns_add_u32 s{sT[0]}, s{sT[0]}, {OFF_STAMP}')
        a(f'v_lshlrev_b32 v{t[3]}, 2, v{vL}\nv_mov_b32 v{t[4]}, {OOB}\nv_cmp_gt_u32 vcc, 16, v{vL}\ns_nop 1\nv_cndmask_b32 v{t[3]}, v{t[4]}, v{t[3]}, vcc')
        a(f'buffer_store_dword v{t[2]}, v{t[3]}, {WSD}, s{sT[0]} offen')
    a(f's_branch {END}')
```

```python
from asmlib import *
from layout import *

class Gemm:
    SRD_WS, SRD_W, SRD_O, SRD_XD = 8, 12, 16, 92
    sXs, sWs, sCnt, sWstep = 20, 21, 22, 23
    sM0x, sM0w, sWv, sWn_, sWm_ = 26, 27, 28, 32, 33
    sXo, sWn, sLdb, sNK = 36, 37, 38, 39
    sT = [40, 41, 42, 43, 44, 45]
    def __init__(self, a, name, NB=4, MB=4, S=4):
        self.a, self.name, self.NB, self.MB, self.S = a, name, NB, MB, S
        self.TN, self.TM = NB*64, MB*64
        self.XS = self.TM*64; self.WSZ = 32*self.TN*2; self.SLOT = self.XS + self.WSZ
        self.nxd = self.XS//4096; self.nwd = self.WSZ//4096; self.nd = self.nxd + self.nwd
        self.rowb = self.TN*2; self.rows_per = 1024//self.rowb
        self.fr = (NB+MB)*8; self.F0 = 48
        self.vL = 1
        self.vXrd = [2, 3]; self.vW = [[list(range(4+8*hi+4*hb, 4+8*hi+4*hb+NB)) for hb in range(2)] for hi in range(2)]
        self.vXd = 20; self.vWd = [21, 22, 23, 24]; self.vWk = [25, 26, 27, 28]; self.vWc = [29, 30, 31, 32]
        self.vXl = 33; self.vOl = 34; self.vO = 35; self.t = list(range(36, 44))
        self.lds = S*self.SLOT
        assert self.lds <= 131072 and S % 2 == 0
    def xf(self, p, mb, hb): return self.F0 + p*self.fr + (hb*(self.NB+self.MB) + mb)*4
    def wf(self, p, nb, hb): return self.F0 + p*self.fr + (hb*(self.NB+self.MB) + self.MB + nb)*4
    def acc(self, nb, nh, mb, mh): return (nb*self.MB+mb)*16 + (mh*2+nh)*4
    def init(self):
        a, t, NB, MB = self.a, self.t, self.NB, self.MB
        L = self.vL
        a(f'v_lshrrev_b32 v{t[0]}, 6, v0\ns_nop 0\nv_readfirstlane_b32 s{self.sWv}, v{t[0]}\nv_and_b32 v{L}, 63, v0')
        a(f's_and_b32 s{self.sWn_}, s{self.sWv}, 1\ns_lshr_b32 s{self.sWm_}, s{self.sWv}, 1')
        def fsw(dst, sh):
            a(f'v_bfe_u32 v{t[4]}, v{L}, {sh}, 1\nv_bfe_u32 v{t[5]}, v{L}, {sh+1}, 1\nv_xor_b32 v{t[4]}, v{t[4]}, v{t[5]}\nv_lshl_add_u32 v{dst}, v{t[4]}, 1, v{t[5]}')
        fsw(t[2], 2)
        a(f'v_and_b32 v{t[0]}, 15, v{L}\nv_lshrrev_b32 v{t[1]}, 4, v{L}\nv_xor_b32 v{t[1]}, v{t[1]}, v{t[2]}\nv_lshlrev_b32 v{t[1]}, 4, v{t[1]}\nv_lshl_add_u32 v{t[1]}, v{t[0]}, 6, v{t[1]}')
        a(f's_mul_i32 s{self.sT[0]}, s{self.sWm_}, {MB*32*64}\nv_add_u32 v{self.vXrd[0]}, s{self.sT[0]}, v{t[1]}\nv_add_u32 v{self.vXrd[1]}, 65536, v{self.vXrd[0]}')
        a(f'v_bfe_u32 v{t[0]}, v{L}, 2, 2\nv_lshrrev_b32 v{t[1]}, 4, v{L}\nv_lshl_add_u32 v{t[1]}, v{t[1]}, 3, v{t[0]}\nv_mul_u32_u24 v{t[1]}, {self.rowb}, v{t[1]}')
        a(f'v_and_b32 v{t[2]}, 3, v{L}\nv_lshlrev_b32 v{t[2]}, 3, v{t[2]}\nv_bfe_u32 v{t[3]}, v{L}, 4, 1\nv_lshl_add_u32 v{t[2]}, v{t[3]}, 5, v{t[2]}\nv_add_u32 v{t[1]}, v{t[1]}, v{t[2]}\nv_add_u32 v{t[1]}, {self.XS}, v{t[1]}')
        a(f's_mul_i32 s{self.sT[0]}, s{self.sWn_}, {NB}')
        for nb in range(NB):
            r = self.vW[0][0][nb]
            a(f's_add_u32 s{self.sT[1]}, s{self.sT[0]}, {nb}\nv_xor_b32 v{t[2]}, s{self.sT[1]}, v{t[0]}\nv_lshl_add_u32 v{r}, v{t[2]}, 6, v{t[1]}')
            a(f'v_xor_b32 v{self.vW[0][1][nb]}, 32, v{r}\nv_add_u32 v{self.vW[1][0][nb]}, 65536, v{r}\nv_add_u32 v{self.vW[1][1][nb]}, 65536, v{self.vW[0][1][nb]}')
        fsw(t[1], 4)
        a(f'v_and_b32 v{t[0]}, 3, v{L}\nv_xor_b32 v{t[0]}, v{t[0]}, v{t[1]}\nv_lshlrev_b32 v{t[0]}, 4, v{t[0]}\nv_lshrrev_b32 v{t[1]}, 2, v{L}\nv_lshl_add_u32 v{t[0]}, v{t[1]}, 6, v{t[0]}')
        a(f's_mul_i32 s{self.sM0x}, s{self.sWv}, {self.nxd*1024}\nv_add_u32 v{self.vXl}, s{self.sM0x}, v{t[0]}')
        lpr = 64//self.rows_per
        for j in range(self.nwd):
            k, c = self.vWk[j], self.vWc[j]
            a(f's_mul_i32 s{self.sT[0]}, s{self.sWv}, {self.nwd*self.rows_per}\ns_add_u32 s{self.sT[0]}, s{self.sT[0]}, {j*self.rows_per}')
            a(f'v_lshrrev_b32 v{k}, {lpr.bit_length()-1}, v{L}\nv_add_u32 v{k}, s{self.sT[0]}, v{k}')
            a(f'v_and_b32 v{t[1]}, 3, v{k}\nv_lshlrev_b32 v{t[1]}, 2, v{t[1]}\nv_and_b32 v{t[2]}, {lpr-1}, v{L}\nv_xor_b32 v{t[1]}, v{t[1]}, v{t[2]}')
            a(f'v_bfe_u32 v{t[2]}, v{k}, 3, 1\nv_lshlrev_b32 v{t[2]}, 1, v{t[2]}\nv_xor_b32 v{t[1]}, v{t[1]}, v{t[2]}\nv_lshlrev_b32 v{c}, 4, v{t[1]}\nv_subrev_u32 v{c}, {j*1024}, v{c}')
        a(f's_mul_i32 s{self.sM0w}, s{self.sWv}, {self.nwd*1024}\ns_add_u32 s{self.sM0w}, s{self.sM0w}, {self.XS}')
        a(f'v_bfe_u32 v{t[1]}, v{L}, 4, 1\nv_lshlrev_b32 v{t[1]}, 5, v{t[1]}\nv_bfe_u32 v{t[2]}, v{L}, 5, 1\nv_lshl_add_u32 v{self.vOl}, v{t[2]}, 4, v{t[1]}')
    def setup(self):
        a = self.a
        a(f'v_add_u32 v{self.vXd}, s{self.sXo}, v{self.vXl}')
        for j in range(self.nwd):
            a(f'v_mul_lo_u32 v{self.vWd[j]}, v{self.vWk[j]}, s{self.sLdb}\nv_add_u32 v{self.vWd[j]}, v{self.vWd[j]}, v{self.vWc[j]}\nv_add_u32 v{self.vWd[j]}, s{self.sWn}, v{self.vWd[j]}')
        a(f's_mov_b32 s{self.sXs}, 0\ns_mov_b32 s{self.sWs}, 0\ns_lshl_b32 s{self.sWstep}, s{self.sLdb}, 5')
    def dma(self, slot):
        L = []
        for j in range(self.nxd):
            pre = f's_add_u32 m0, s{self.sM0x}, {slot*self.SLOT}\ns_nop 0\n' if j == 0 else ''
            post = f'\ns_add_u32 s{self.sXs}, s{self.sXs}, {M*64}' if j == self.nxd-1 else ''
            L.append(pre + f'buffer_load_dwordx4 v{self.vXd}, s[{self.SRD_XD}:{self.SRD_XD+3}], s{self.sXs} offen offset:{j*1024} lds' + post)
        for j in range(self.nwd):
            pre = f's_add_u32 m0, s{self.sM0w}, {slot*self.SLOT}\ns_nop 0\n' if j == 0 else ''
            post = f'\ns_add_u32 s{self.sWs}, s{self.sWs}, s{self.sWstep}' if j == self.nwd-1 else ''
            L.append(pre + f'buffer_load_dwordx4 v{self.vWd[j]}, s[{self.SRD_W}:{self.SRD_W+3}], s{self.sWs} offen offset:{j*1024} lds' + post)
        return L
    def reads(self, slot, p):
        L = []
        for i in range(max(self.NB, self.MB)):
            for hb in range(2):
                if i < self.NB:
                    for hh in range(2):
                        o = slot*self.SLOT + hh*4*self.rowb; hi = int(o >= 65536)
                        L.append(f'ds_read_b64_tr_b16 {vr(self.wf(p,i,hb)+2*hh,2)}, v{self.vW[hi][hb][i]} offset:{o-65536*hi}')
                if i < self.MB:
                    o = slot*self.SLOT + i*2048 + hb*1024; hi = int(o >= 65536)
                    L.append(f'ds_read_b128 {vr(self.xf(p,i,hb),4)}, v{self.vXrd[hi]} offset:{o-65536*hi}')
        return L
    def mfmas(self, p, zero=False):
        return [f'v_mfma_f32_16x16x32_bf16 {ar(self.acc(nb,nh,mb,mh),4)}, {vr(self.wf(p,nb,nh),4)}, {vr(self.xf(p,mb,mh),4)}, {0 if zero else ar(self.acc(nb,nh,mb,mh),4)}'
                for nb in range(self.NB) for nh in range(2) for mb in range(self.MB) for mh in range(2)]
    def prologue(self, zero=True):
        a = self.a
        a('s_barrier')
        for s in range(self.S):
            for x in self.dma(s): a(x)
        if zero:
            for i in range(self.NB*self.MB*16): a(f'v_accvgpr_write_b32 a{i}, 0')
        a(f's_waitcnt vmcnt({self.nd*(self.S-1)})\ns_barrier')
        for x in self.reads(0, 0): a(x)
        a(f's_mov_b32 s{self.sCnt}, s{self.sNK}')
    def trip(self, first=False, extra=0, post=None):
        a = self.a
        for u in range(self.S):
            p = u & 1
            R = self.reads((u+1) % self.S, p ^ 1); D = self.dma(u)
            fill = []; ri = di = 0; step = max(1, len(R)//len(D))
            while ri < len(R) or di < len(D):
                for _ in range(step):
                    if ri < len(R): fill.append(R[ri]); ri += 1
                if di < len(D): fill.append(D[di]); di += 1
            m = self.mfmas(p, first and u == 0)
            a(f's_waitcnt vmcnt({self.nd*(self.S-2) + (extra if u < self.S-1 else 0)}) lgkmcnt(0)\ns_barrier')
            if post and u == self.S-1: post(a)
            for x in spread(m, fill, 0, len(m)-6): a(x)
    def loop(self, tag, hook=None):
        a = self.a
        a('.p2align 6'); a.lab(f'{self.name}_loop{tag}')
        if hook: hook(a)
        self.trip()
        a(f's_sub_u32 s{self.sCnt}, s{self.sCnt}, 1\ns_cmp_lg_u32 s{self.sCnt}, 0\ns_cbranch_scc1 {self.name}_loop{tag}')
    def epilogue_kb(self, sOo, relu, sc=''):
        a, t = self.a, self.t
        a('s_waitcnt lgkmcnt(0)')
        a(f'v_and_b32 v{t[0]}, 15, v{self.vL}\nv_lshl_add_u32 v{t[0]}, v{t[0]}, 6, v{self.vOl}')
        a(f's_mul_i32 s{self.sT[0]}, s{self.sWn_}, {self.NB*M*64}\ns_mul_i32 s{self.sT[1]}, s{self.sWm_}, {self.MB*2048}\ns_add_u32 s{self.sT[0]}, s{self.sT[0]}, s{self.sT[1]}\ns_add_u32 s{self.sT[0]}, s{self.sT[0]}, s{sOo}')
        a(f'v_add_u32 v{self.vO}, s{self.sT[0]}, v{t[0]}\ns_nop 7')
        for nb in range(self.NB):
            for mb in range(self.MB):
                T = self.F0 + self.fr + ((nb*self.MB+mb) % 2)*24
                if mb % 2 == 0: a(f's_mov_b32 s{self.sT[2]}, {nb*M*64 + mb*2048}')
                for r in range(16): a(f'v_accvgpr_read_b32 v{T+8+r}, a{self.acc(nb,0,mb,0)+r}')
                for r in range(8): a(f'v_cvt_pk_bf16_f32 v{T+r}, v{T+8+2*r}, v{T+9+2*r}')
                for r in range(8): a(f'v_pk_max_i16 v{T+r}, v{T+r}, s{relu}')
                a(f's_nop 1\nv_permlane16_swap_b32 v{T}, v{T+2}\nv_permlane16_swap_b32 v{T+1}, v{T+3}\nv_permlane16_swap_b32 v{T+4}, v{T+6}\nv_permlane16_swap_b32 v{T+5}, v{T+7}')
                o = (mb % 2)*2048
                W = f's[{self.SRD_WS}:{self.SRD_WS+3}]'
                a(f'buffer_store_dwordx4 {vr(T,4)}, v{self.vO}, {W}, s{self.sT[2]} offen offset:{o}{sc}\nbuffer_store_dwordx4 {vr(T+4,4)}, v{self.vO}, {W}, s{self.sT[2]} offen offset:{o+1024}{sc}')
    def epilogue_out(self, sOo, SRD_X):
        a, t = self.a, self.t
        a('s_waitcnt lgkmcnt(0)')
        a(f'v_and_b32 v{t[0]}, 15, v{self.vL}\nv_lshl_add_u32 v{t[0]}, v{t[0]}, 11, v{self.vOl}')
        a(f's_mul_i32 s{self.sT[0]}, s{self.sWn_}, {self.NB*64}\ns_mul_i32 s{self.sT[1]}, s{self.sWm_}, {self.MB*32*2048}\ns_add_u32 s{self.sT[0]}, s{self.sT[0]}, s{self.sT[1]}\ns_add_u32 s{self.sT[0]}, s{self.sT[0]}, s{sOo}')
        a(f'v_add_u32 v{self.vO}, s{self.sT[0]}, v{t[0]}\ns_mov_b32 s{self.sT[3]}, 0xffff0000')
        XR = self.F0 + 48
        n = 0
        for mb in range(self.MB):
            for mh in range(2):
                a(f's_mov_b32 s{self.sT[2]}, {(mb*32+mh*16)*2048}')
                for nb in range(self.NB):
                    a(f'buffer_load_dwordx4 {vr(XR+4*n,4)}, v{self.vO}, s[{SRD_X}:{SRD_X+3}], s{self.sT[2]} offen offset:{nb*64}'); n += 1
        a('s_nop 7')
        n = 0; tot = self.MB*2*self.NB
        for mb in range(self.MB):
            for mh in range(2):
                a(f's_mov_b32 s{self.sT[2]}, {(mb*32+mh*16)*2048}')
                for nb in range(self.NB):
                    T = self.F0 + (n % 2)*16
                    for r in range(8): a(f'v_accvgpr_read_b32 v{T+r}, a{self.acc(nb,0,mb,mh)+r}')
                    a('s_nop 1')
                    for r in range(4): a(f'v_permlane16_swap_b32 v{T+r}, v{T+4+r}')
                    a(f's_waitcnt vmcnt({tot-1})')
                    for r in range(4):
                        a(f'v_lshlrev_b32 v{T+8}, 16, v{XR+4*n+r}\nv_and_b32 v{T+9}, s{self.sT[3]}, v{XR+4*n+r}\nv_add_f32 v{T+2*r}, v{T+2*r}, v{T+8}\nv_add_f32 v{T+2*r+1}, v{T+2*r+1}, v{T+9}')
                        a(f'v_cvt_pk_bf16_f32 v{T+12+r}, v{T+2*r}, v{T+2*r+1}')
                    a(f'buffer_store_dwordx4 {vr(T+12,4)}, v{self.vO}, s[{self.SRD_O}:{self.SRD_O+3}], s{self.sT[2]} offen offset:{nb*64}')
                    n += 1
    def epilogue_part(self, sOo, sXr, SRD_X, sc=''):
        a, t = self.a, self.t
        a('s_waitcnt lgkmcnt(0)')
        a(f'v_and_b32 v{t[0]}, 15, v{self.vL}\nv_lshl_add_u32 v{t[0]}, v{t[0]}, 11, v{self.vOl}')
        a(f's_mul_i32 s{self.sT[0]}, s{self.sWn_}, {self.NB*64}\ns_mul_i32 s{self.sT[1]}, s{self.sWm_}, {self.MB*32*2048}\ns_add_u32 s{self.sT[0]}, s{self.sT[0]}, s{self.sT[1]}')
        a(f'v_add_u32 v{t[0]}, s{self.sT[0]}, v{t[0]}\nv_add_u32 v{self.vO}, s{sXr}, v{t[0]}\nv_lshlrev_b32 v{t[0]}, 1, v{t[0]}\nv_add_u32 v{t[1]}, s{sOo}, v{t[0]}\ns_mov_b32 s{self.sT[3]}, 0xffff0000')
        XR = self.F0 + 48
        n = 0
        for mb in range(self.MB):
            for mh in range(2):
                a(f's_mov_b32 s{self.sT[2]}, {(mb*32+mh*16)*2048}')
                for nb in range(self.NB):
                    a(f'buffer_load_dwordx4 {vr(XR+4*n,4)}, v{self.vO}, s[{SRD_X}:{SRD_X+3}], s{self.sT[2]} offen offset:{nb*64}'); n += 1
        a('s_nop 7')
        n = 0; tot = self.MB*2*self.NB
        W = f's[{self.SRD_WS}:{self.SRD_WS+3}]'
        for mb in range(self.MB):
            for mh in range(2):
                a(f's_mov_b32 s{self.sT[2]}, {(mb*32+mh*16)*4096}')
                for nb in range(self.NB):
                    T = self.F0 + (n % 2)*16
                    for r in range(8): a(f'v_accvgpr_read_b32 v{T+r}, a{self.acc(nb,0,mb,mh)+r}')
                    a('s_nop 1')
                    for r in range(4): a(f'v_permlane16_swap_b32 v{T+r}, v{T+4+r}')
                    a(f's_waitcnt vmcnt({tot-1+n})')
                    for r in range(4):
                        a(f'v_lshlrev_b32 v{T+8}, 16, v{XR+4*n+r}\nv_and_b32 v{T+9}, s{self.sT[3]}, v{XR+4*n+r}\nv_add_f32 v{T+2*r}, v{T+2*r}, v{T+8}\nv_add_f32 v{T+2*r+1}, v{T+2*r+1}, v{T+9}')
                    a(f'buffer_store_dwordx4 {vr(T,4)}, v{t[1]}, {W}, s{self.sT[2]} offen offset:{nb*128}{sc}\nbuffer_store_dwordx4 {vr(T+4,4)}, v{t[1]}, {W}, s{self.sT[2]} offen offset:{nb*128+16}{sc}')
                    n += 1
    def epilogue_fin(self, sOo, sPo):
        a, t = self.a, self.t
        a('s_waitcnt lgkmcnt(0)')
        a(f'v_and_b32 v{t[0]}, 15, v{self.vL}\nv_lshl_add_u32 v{t[0]}, v{t[0]}, 11, v{self.vOl}')
        a(f's_mul_i32 s{self.sT[0]}, s{self.sWn_}, {self.NB*64}\ns_mul_i32 s{self.sT[1]}, s{self.sWm_}, {self.MB*32*2048}\ns_add_u32 s{self.sT[0]}, s{self.sT[0]}, s{self.sT[1]}')
        a(f'v_add_u32 v{t[0]}, s{self.sT[0]}, v{t[0]}\nv_add_u32 v{self.vO}, s{sOo}, v{t[0]}\nv_lshlrev_b32 v{t[0]}, 1, v{t[0]}\nv_add_u32 v{t[1]}, s{sPo}, v{t[0]}')
        XR = self.F0 + 48
        W = f's[{self.SRD_WS}:{self.SRD_WS+3}]'
        n = 0
        for mb in range(self.MB):
            for mh in range(2):
                a(f's_mov_b32 s{self.sT[2]}, {(mb*32+mh*16)*4096}')
                for nb in range(self.NB):
                    a(f'buffer_load_dwordx4 {vr(XR+8*n,4)}, v{t[1]}, {W}, s{self.sT[2]} offen offset:{nb*128}\nbuffer_load_dwordx4 {vr(XR+8*n+4,4)}, v{t[1]}, {W}, s{self.sT[2]} offen offset:{nb*128+16}'); n += 1
        a('s_nop 7')
        n = 0; tot = self.MB*2*self.NB
        for mb in range(self.MB):
            for mh in range(2):
                a(f's_mov_b32 s{self.sT[2]}, {(mb*32+mh*16)*2048}')
                for nb in range(self.NB):
                    T = self.F0 + (n % 2)*16
                    for r in range(8): a(f'v_accvgpr_read_b32 v{T+r}, a{self.acc(nb,0,mb,mh)+r}')
                    a('s_nop 1')
                    for r in range(4): a(f'v_permlane16_swap_b32 v{T+r}, v{T+4+r}')
                    a(f's_waitcnt vmcnt({2*(tot-1-n)+n})')
                    for r in range(8): a(f'v_add_f32 v{T+r}, v{T+r}, v{XR+8*n+r}')
                    for r in range(4): a(f'v_cvt_pk_bf16_f32 v{T+12+r}, v{T+2*r}, v{T+2*r+1}')
                    a(f'buffer_store_dwordx4 {vr(T+12,4)}, v{self.vO}, s[{self.SRD_O}:{self.SRD_O+3}], s{self.sT[2]} offen offset:{nb*64}')
                    n += 1
```

```python
M = 2048
MBY = 1 << 20
WS_SIZE = 256 * MBY
OFF_C    = 0
OFF_BC   = 0
OFF_D    = 0x300000
OFF_A    = 0x330000
OFF_B    = 0x3F0000
OFF_TAB  = 0x570000
ARM_END  = 0x571000
OFF_CNT  = 0x580000
OFF_PAR  = 0x581000
OFF_T    = 6 * MBY
OFF_XN   = 8 * MBY
OFF_K    = 16 * MBY
OFF_V    = 32 * MBY
OFF_Q    = 48 * MBY
OFF_H    = 64 * MBY
OFF_O    = 78 * MBY
OFF_KM   = 96 * MBY
OFF_VM   = 100 * MBY
OFF_STAMP= 104 * MBY
OFF_PART = 112 * MBY
TAB_XCC  = OFF_TAB
TAB_KV   = OFF_TAB + 1024
TAB_H    = OFF_TAB + 3584

OOB = 0x80000000
ARM_SEGS = [(OFF_C, OFF_C + 0xC0000), (OFF_D, ARM_END)]
```

```python
from asmlib import *
from layout import *
import struct
def f32(x): return struct.unpack('<I', struct.pack('<f', x))[0]

def wave_sum(a, v, t):
    for ror in (8, 4, 2, 1):
        a(f's_nop 1\nv_add_f32_dpp v{v}, v{v}, v{v} row_ror:{ror} row_mask:0xf bank_mask:0xf')
    a(f'v_mov_b32 v{t}, v{v}\ns_nop 1\nv_permlane16_swap_b32 v{v}, v{t}\nv_add_f32 v{v}, v{v}, v{t}')
    a(f'v_mov_b32 v{t}, v{v}\ns_nop 1\nv_permlane32_swap_b32 v{v}, v{t}\nv_add_f32 v{v}, v{v}, v{t}')

def gen_prep(name, nwg=256, pf=(3,4,5,2)):
    a = Asm(); a(khead(name))
    END = name+'_end'
    a(f's_cmp_gt_u32 s2, {nwg}\ns_cbranch_scc1 {END}')
    a('s_load_dwordx2 s[8:9], s[0:1], 0\ns_load_dwordx2 s[12:13], s[0:1], 96')
    a(f's_mov_b32 s10, {M*1024*2}\ns_mov_b32 s11, 0x20000\ns_mov_b32 s14, {WS_SIZE}\ns_mov_b32 s15, 0x20000')
    a('v_and_b32 v1, 63, v0\nv_lshrrev_b32 v2, 6, v0\ns_lshl_b32 s3, s2, 3\nv_add_u32 v2, s3, v2')
    a('v_lshlrev_b32 v3, 11, v2\nv_lshl_add_u32 v3, v1, 4, v3')
    a(f'v_lshrrev_b32 v4, 2, v1\nv_lshlrev_b32 v4, 17, v4\nv_and_b32 v5, 3, v1\nv_lshl_add_u32 v4, v5, 4, v4\nv_lshl_add_u32 v4, v2, 6, v4\nv_add_u32 v4, {OFF_XN}, v4')
    a('s_waitcnt lgkmcnt(0)')
    lp = name+'_np'
    a(f's_cmp_lg_u32 s2, {nwg}\ns_cbranch_scc1 {lp}\nv_readfirstlane_b32 s20, v0\ns_cmp_lg_u32 s20, 0\ns_cbranch_scc1 {END}')
    a(f'v_mov_b32 v40, 0\nv_mov_b32 v43, -1\ns_mov_b32 s24, -1\ns_mov_b32 s25, -1')
    a('buffer_store_dword v43, v40, s[12:15], 0 offen sc1\ns_waitcnt vmcnt(0)')
    for k in range(5):
        for h in range(2):
            off = k*16384 + h*8192 + 256
            a(f'v_mov_b32 v41, {off}\ns_memtime s[26:27]\ns_waitcnt lgkmcnt(0)\nbuffer_store_dword v43, v41, s[12:15], 0 offen sc1\ns_waitcnt vmcnt(0)')
            a(f's_memtime s[28:29]\ns_waitcnt lgkmcnt(0)\ns_sub_u32 s28, s28, s26\ns_min_u32 s{24+h}, s{24+h}, s28')
    a('s_getreg_b32 s26, hwreg(HW_REG_XCC_ID)\ns_bfe_u32 s26, s26, 0x10002\ns_cmp_lt_u32 s25, s24\ns_cselect_b32 s27, 1, 0\ns_xor_b32 s27, s27, s26')
    a(f'v_mov_b32 v42, s27\nv_mov_b32 v41, {OFF_PAR}\nbuffer_store_dword v42, v41, s[12:15], 0 offen\ns_endpgm')
    a.lab(lp)
    a('s_mov_b32 s20, 8192')
    for r in range(2):
        so = '0' if r == 0 else 's20'
        a(f'buffer_load_dwordx4 v[{8+8*r}:{11+8*r}], v3, s[8:11], {so} offen\nbuffer_load_dwordx4 v[{12+8*r}:{15+8*r}], v3, s[8:11], {so} offen offset:1024')
    per = ARM_END // 16 // 256
    assert ARM_END % 4096 == 0
    a('v_mov_b32 v44, -1\nv_mov_b32 v45, -1\nv_mov_b32 v46, -1\nv_mov_b32 v47, -1')
    a(f's_mul_i32 s21, s2, {per*16}\nv_lshlrev_b32 v43, 4, v0\nv_add_u32 v43, s21, v43')
    nfull = per // 256; rem = per % 256
    for k in range(nfull):
        a(f's_mov_b32 s22, {k*4096}\nbuffer_store_dwordx4 v[44:47], v43, s[12:15], s22 offen')
    if rem:
        a(f'v_cmp_gt_u32 vcc, {rem}, v0\nv_mov_b32 v48, {OOB}\ns_mov_b32 s22, {nfull*4096}\nv_cndmask_b32 v43, v48, v43, vcc\nbuffer_store_dwordx4 v[44:47], v43, s[12:15], s22 offen')
    lz = name+'_nz'
    a(f's_cmp_lg_u32 s2, 1\ns_cbranch_scc1 {lz}')
    a(f'v_mov_b32 v48, 0\nv_mov_b32 v49, 0\nv_mov_b32 v50, 0\nv_mov_b32 v51, 0\nv_lshlrev_b32 v43, 4, v0\nv_add_u32 v43, {OFF_CNT}, v43\nbuffer_store_dwordx4 v[48:51], v43, s[12:15], 0 offen')
    a.lab(lz)
    a(f's_mov_b32 s23, {f32(1/1024.):#x}\ns_mov_b32 s24, {f32(1e-5):#x}\ns_mov_b32 s25, 0xffff0000\ns_mov_b32 s22, {16*131072}')
    npf = 0
    for m in pf:
        a(f's_load_dwordx2 s[16:17], s[0:1], {8*m}\ns_mov_b32 s18, {8*MBY}\ns_mov_b32 s19, 0x20000\ns_lshl_b32 s21, s2, 15\nv_lshlrev_b32 v43, 4, v0\ns_waitcnt lgkmcnt(0)')
        for k in range(8):
            a(f'buffer_load_dwordx4 v[52:55], v43, s[16:19], s21 offen\ns_add_u32 s21, s21, 4096'); npf += 1
    a(f's_waitcnt vmcnt({npf})')
    for r in range(2):
        B = 8+8*r; F = 24
        for k in range(8): a(f'v_lshlrev_b32 v{F+2*k}, 16, v{B+k}\nv_and_b32 v{F+2*k+1}, s25, v{B+k}')
        a(f'v_add_f32 v6, v{F}, v{F+1}')
        for k in range(2, 16): a(f'v_add_f32 v6, v6, v{F+k}')
        wave_sum(a, 6, 7)
        a('v_mul_f32 v6, s23, v6')
        a(f'v_sub_f32 v40, v{F}, v6\nv_mul_f32 v5, v40, v40')
        for k in range(1, 16): a(f'v_sub_f32 v40, v{F+k}, v6\nv_fmac_f32 v5, v40, v40')
        wave_sum(a, 5, 7)
        a('v_mul_f32 v5, s23, v5')
        a('v_cvt_pk_bf16_f32 v6, v6, v5\nv_and_b32 v5, s25, v6\nv_lshlrev_b32 v6, 16, v6\nv_add_f32 v5, s24, v5')
        a('v_cvt_pk_bf16_f32 v5, v5, v5\nv_lshlrev_b32 v5, 16, v5\nv_sqrt_f32 v5, v5\ns_nop 0\nv_cvt_pk_bf16_f32 v5, v5, v5\nv_lshlrev_b32 v5, 16, v5\nv_rcp_f32 v7, v5')
        for k in range(8):
            a(f'v_sub_f32 v{F+2*k}, v{F+2*k}, v6\nv_sub_f32 v{F+2*k+1}, v{F+2*k+1}, v6\nv_cvt_pk_bf16_f32 v40, v{F+2*k}, v{F+2*k+1}')
            a(f'v_lshlrev_b32 v{F+2*k}, 16, v40\nv_and_b32 v{F+2*k+1}, s25, v40')
            for j in (2*k, 2*k+1):
                a(f'v_mul_f32 v41, v{F+j}, v7\nv_fma_f32 v42, -v41, v5, v{F+j}\nv_fma_f32 v{F+j}, v42, v7, v41')
            a(f'v_cvt_pk_bf16_f32 v{B+k}, v{F+2*k}, v{F+2*k+1}')
        a(f'buffer_store_dwordx4 v[{B}:{B+3}], v4, s[12:15], 0 offen offset:{r*256}\nbuffer_store_dwordx4 v[{B+4}:{B+7}], v4, s[12:15], s22 offen offset:{r*256}')
    a.lab(END); a('s_endpgm')
    return a.text()
```

```python
from asmlib import *
from layout import *
from prep_gen import wave_sum, f32

def rows_issue(a, sG, V0, NR):
    v = lambda k: V0 + k
    a(f's_load_dwordx2 s[12:13], s[0:1], 0\ns_mov_b32 s14, {M*2048}\ns_mov_b32 s15, 0x20000')
    a(f'v_and_b32 v{v(1)}, 63, v0\nv_lshrrev_b32 v{v(2)}, 6, v0\ns_mul_i32 s20, s{sG}, {4*NR}\nv_add_u32 v{v(2)}, s20, v{v(2)}')
    a(f'v_lshlrev_b32 v{v(3)}, 11, v{v(2)}\nv_lshl_add_u32 v{v(3)}, v{v(1)}, 4, v{v(3)}')
    a(f'v_lshrrev_b32 v{v(4)}, 2, v{v(1)}\nv_lshlrev_b32 v{v(4)}, 17, v{v(4)}\nv_and_b32 v{v(5)}, 3, v{v(1)}\nv_lshl_add_u32 v{v(4)}, v{v(5)}, 4, v{v(4)}\nv_lshl_add_u32 v{v(4)}, v{v(2)}, 6, v{v(4)}\nv_add_u32 v{v(4)}, {OFF_XN}, v{v(4)}')
    a('s_waitcnt lgkmcnt(0)')
    for r in range(NR):
        a(f's_mov_b32 s20, {r*8192}\nbuffer_load_dwordx4 {vr(v(52+8*r),4)}, v{v(3)}, s[12:15], s20 offen\nbuffer_load_dwordx4 {vr(v(56+8*r),4)}, v{v(3)}, s[12:15], s20 offen offset:1024')

def fill_issue(a, sB, V0):
    v = lambda k: V0 + k
    segs = ARM_SEGS
    a(f'v_mov_b32 v{v(44)}, -1\nv_mov_b32 v{v(45)}, -1\nv_mov_b32 v{v(46)}, -1\nv_mov_b32 v{v(47)}, -1')
    n = 0
    for (lo, hi) in segs:
        per = (hi - lo)//256; assert per % 16 == 0
        a(f's_mul_i32 s21, s{sB}, {per}\ns_add_u32 s21, s21, {lo}\nv_lshlrev_b32 v{v(43)}, 4, v0')
        for k in range(0, per, 4096):
            if per - k < 4096:
                a(f'v_cmp_gt_u32 vcc, {(per-k)//16}, v0\nv_mov_b32 v{v(48)}, {OOB}\ns_nop 0\nv_cndmask_b32 v{v(43)}, v{v(48)}, v{v(43)}, vcc')
            a(f'buffer_store_dwordx4 {vr(v(44),4)}, v{v(43)}, s[8:11], s21 offen sc1\ns_add_u32 s21, s21, 4096'); n += 1
    return n

def rows_finish(a, V0, NR, younger):
    v = lambda k: V0 + k
    a(f's_mov_b32 s23, {f32(1/1024.):#x}\ns_mov_b32 s24, {f32(1e-5):#x}\ns_mov_b32 s25, 0xffff0000\ns_mov_b32 s22, {16*131072}')
    m, s2, rc = v(6), v(5), v(7)
    for r in range(NR):
        B = v(52+8*r); F = v(24); T = v(40)
        a(f's_waitcnt vmcnt({younger + 2*(NR-1)})')
        for k in range(8): a(f'v_lshlrev_b32 v{F+2*k}, 16, v{B+k}\nv_and_b32 v{F+2*k+1}, s25, v{B+k}')
        a(f'v_add_f32 v{m}, v{F}, v{F+1}')
        for k in range(2, 16): a(f'v_add_f32 v{m}, v{m}, v{F+k}')
        wave_sum(a, m, rc)
        a(f'v_mul_f32 v{m}, s23, v{m}')
        a(f'v_sub_f32 v{T}, v{F}, v{m}\nv_mul_f32 v{s2}, v{T}, v{T}')
        for k in range(1, 16): a(f'v_sub_f32 v{T}, v{F+k}, v{m}\nv_fmac_f32 v{s2}, v{T}, v{T}')
        wave_sum(a, s2, rc)
        a(f'v_mul_f32 v{s2}, s23, v{s2}')
        a(f'v_cvt_pk_bf16_f32 v{m}, v{m}, v{s2}\nv_and_b32 v{s2}, s25, v{m}\nv_lshlrev_b32 v{m}, 16, v{m}\nv_add_f32 v{s2}, s24, v{s2}')
        a(f'v_cvt_pk_bf16_f32 v{s2}, v{s2}, v{s2}\nv_lshlrev_b32 v{s2}, 16, v{s2}\nv_sqrt_f32 v{s2}, v{s2}\ns_nop 0\nv_cvt_pk_bf16_f32 v{s2}, v{s2}, v{s2}\nv_lshlrev_b32 v{s2}, 16, v{s2}\nv_rcp_f32 v{rc}, v{s2}')
        for k in range(8):
            a(f'v_sub_f32 v{F+2*k}, v{F+2*k}, v{m}\nv_sub_f32 v{F+2*k+1}, v{F+2*k+1}, v{m}\nv_cvt_pk_bf16_f32 v{T}, v{F+2*k}, v{F+2*k+1}')
            a(f'v_lshlrev_b32 v{F+2*k}, 16, v{T}\nv_and_b32 v{F+2*k+1}, s25, v{T}')
            for j in (2*k, 2*k+1):
                a(f'v_mul_f32 v{T+1}, v{F+j}, v{rc}\nv_fma_f32 v{T+2}, -v{T+1}, v{s2}, v{F+j}\nv_fma_f32 v{F+j}, v{T+2}, v{rc}, v{T+1}')
            a(f'v_cvt_pk_bf16_f32 v{B+k}, v{F+2*k}, v{F+2*k+1}')
        a(f'buffer_store_dwordx4 {vr(B,4)}, v{v(4)}, s[8:11], 0 offen offset:{r*256} sc1\nbuffer_store_dwordx4 {vr(B+4,4)}, v{v(4)}, s[8:11], s22 offen offset:{r*256} sc1')
```

```python
import sys
from asmlib import *
from layout import *
from start_gen import rows_issue, rows_finish, fill_issue
from gemm_gen import Gemm
from attn_gen import gen_attn_kernel
from chain5_gen import gen_chain, CHAIN_LDS
KN = 'parallel_sum__memory_aug_recurrent_mem_tr__dense_activation_relu__prompt'
NJ = 8
T_BIG, T_FFN2, T_END = 16, 32, 255
OUTB = [OFF_K, OFF_V, OFF_Q, OFF_H]

def schedule():
    def big(mat, tm, tn):
        if mat < 2: f = [TAB_KV + tm*256 + (2*tn+k)*8 + 4*mat for k in range(2)]
        elif mat == 3: f = [TAB_H + tm*64 + tn*4, OOB]
        else: f = [OOB, OOB]
        return [T_BIG + mat, OFF_XN + tm*16384, tn*512, OUTB[mat] + tn*8*131072 + tm*16384, f[0], f[1], 0, 0]
    def ffn2(tm, tn):
        return [T_FFN2, OFF_H + tm*8192, tn*256, OFF_PART + tm*128*4096 + tn*512, OOB, OOB, TAB_H + (tm>>1)*64, tm*128*2048 + tn*256]
    J = []
    for gx in range(4):
        for sl in range(32):
            L = []
            tm2, tn = sl & 1, gx*16 + (sl >> 1); mat, h = tn >> 5, tn & 31
            for rb in range(2):
                L.append([mat, OFF_XN + (2*rb+tm2)*8192, h*256, OUTB[mat] + h*4*131072 + (2*rb+tm2)*8192, TAB_KV + (8+rb if tm2 else rb)*256 + h*8 + 4*mat, OOB, 0, 0])
            tnn = gx*8 + (sl >> 2); L.append(big(tnn >> 4, 2 + (sl & 3), tnn & 15))
            if sl < 16: tnn = gx*8 + (sl >> 1); L.append(big(tnn >> 4, 6 + (sl & 1), tnn & 15))
            else: i = gx*16 + sl-16; L.append(big(3, i % 8, i//8))
            if sl < 12: i = gx*12 + sl; L.append(big(3, i % 8, 8 + i//8))
            else: i = gx*20 + sl-12; L.append(big(2, i % 8, i//8))
            f2 = lambda k: ffn2(gx*4 + k//8, k % 8)
            if sl < 12: i = gx*12 + sl; L.append(big(2, i % 8, 10 + i//8)); L.append(f2(20 + sl))
            else: L.append(f2(sl - 12))
            L += [[T_END] + [0]*7]*(NJ - len(L))
            J.append(L)
    return J

def gen_main(name, **kw):
    a = Asm(); a(khead(name)); END = name+'_end'
    sB, sMode = 96, 97
    a(f's_cmp_ge_u32 s2, 256\ns_cbranch_scc1 {END}')
    pf = kw.pop('pf', (3, 4))
    V0 = 180
    a(f's_load_dwordx2 s[8:9], s[0:1], 96\ns_load_dwordx2 s[16:17], s[0:1], 88\ns_mov_b32 s10, {WS_SIZE}\ns_mov_b32 s11, 0x20000\ns_mov_b32 s{sB}, s2\ns_mov_b32 s{sMode}, 0')
    a(f's_mov_b32 s18, 256\ns_mov_b32 s19, 0x20000\ns_getreg_b32 s2, hwreg(HW_REG_XCC_ID)\ns_and_b32 s2, s2, 7\ns_lshr_b32 s3, s{sB}, 3\ns_mov_b32 s4, 0')
    if kw.get('light'): a('s_memrealtime s[50:51]')
    V0 = 160
    lp = name+'_np'
    a(f'v_readfirstlane_b32 s20, v0\ns_or_b32 s21, s3, s2\ns_xor_b32 s20, s20, 192\ns_or_b32 s20, s20, s21\ns_cmp_lg_u32 s20, 0\ns_cbranch_scc1 {lp}')
    a(f's_mov_b32 s24, -1\ns_mov_b32 s25, -1\nv_mov_b32 v{V0+44}, -1\nv_mov_b32 v{V0+48}, 0x1f0000\ns_waitcnt lgkmcnt(0)\nbuffer_store_dword v{V0+44}, v{V0+48}, s[8:11], 0 offen sc1\ns_waitcnt vmcnt(0)')
    for k in range(kw.pop('nprobe', 3)):
        for h in range(2):
            a(f'v_mov_b32 v{V0+48}, {0x100000 + k*16640 + h*8192}\ns_memtime s[26:27]\ns_waitcnt lgkmcnt(0)\nbuffer_store_dword v{V0+44}, v{V0+48}, s[8:11], 0 offen sc1\ns_waitcnt vmcnt(0)')
            a(f's_memtime s[28:29]\ns_waitcnt lgkmcnt(0)\ns_sub_u32 s28, s28, s26\ns_min_u32 s{24+h}, s{24+h}, s28')
    a('s_cmp_lt_u32 s25, s24\ns_cselect_b32 s4, 48, 32')
    if kw.get('light'): a(f'v_mov_b32 v5, s24\nv_mov_b32 v6, s25\nv_mov_b32 v7, {OFF_PAR}\nbuffer_store_dword v5, v7, s[8:11], 0 offen\nbuffer_store_dword v6, v7, s[8:11], 0 offen offset:4')
    a.lab(lp)
    lq = name+'_nq'
    def signal(extra=''):
        a(f's_add_u32 s5, s2, 1\n{extra}v_mov_b32 v2, {OOB}\nv_cmp_eq_u32 vcc, 192, v0\nv_mov_b32 v3, s5\nv_mov_b32 v4, s{sB}\nv_cndmask_b32 v2, v2, v4, vcc\nbuffer_store_byte v3, v2, s[16:19], 0 offen sc1')
    a(f's_bitcmp1_b32 s{sB}, 2\ns_cbranch_scc0 {lq}\ns_and_b32 s6, s{sB}, 3\ns_lshl_b32 s7, s3, 2\ns_or_b32 s6, s6, s7')
    rows_issue(a, 6, V0, 4)
    nfill = fill_issue(a, sB, V0)
    rows_finish(a, V0, 4, nfill)
    a(f's_branch {name}_sig')
    a.lab(lq)
    a('s_waitcnt lgkmcnt(0)')
    fill_issue(a, sB, V0)
    a.lab(name+'_sig')
    a('s_waitcnt vmcnt(0)\ns_barrier'); signal('s_or_b32 s5, s5, s4\n')
    a.lab(name+'_start')
    a(f's_cmp_ge_u32 s2, 4\ns_cbranch_scc1 {name}_worker\ns_cmp_eq_u32 s{sMode}, 0\ns_cbranch_scc0 {name}_safe')
    def verify(a, vt, lane, wave, par=False):
        l0, l1, ok = a.newlab(name+'_v'), a.newlab(name+'_v'), a.newlab(name+'_v')
        a(f's_cmp_eq_u32 s{sMode}, 0\ns_cbranch_scc0 {ok}\ns_mov_b32 s98, {1<<22}\ns_load_dwordx2 s[56:57], s[0:1], 88\ns_mov_b32 s58, 256\ns_mov_b32 s59, 0x20000\nv_lshlrev_b32 v{vt+4}, 2, v{lane}\ns_waitcnt lgkmcnt(0)')
        a.lab(l0)
        a(f'buffer_load_dword v{vt}, v{vt+4}, s[56:59], 0 offen sc1\ns_waitcnt vmcnt(0)')
        a(f'v_subrev_u32 v{vt+1}, 0x01010101, v{vt}\nv_and_b32 v{vt+1}, 0x80808080, v{vt+1}\nv_cmp_ne_u32 vcc, 0, v{vt+1}\ns_cbranch_vccz {l1}')
        a(f's_sub_u32 s98, s98, 1\ns_cbranch_scc1 {END}\ns_sleep 4\ns_branch {l0}')
        a.lab(l1)
        for k in range(4): a(f'v_bfe_u32 v{vt+1+(k&1)}, v{vt}, {8*k}, 4\nv_lshlrev_b32 v{vt+1+(k&1)}, v{vt+1+(k&1)}, 1\n' + (f'v_mov_b32 v{vt+3}, v{vt+1}' if k == 0 else f'v_or_b32 v{vt+3}, v{vt+3}, v{vt+1+(k&1)}'))
        a(f's_nop 1\nv_or_b32_dpp v{vt+3}, v{vt+3}, v{vt+3} quad_perm:[1,0,3,2] row_mask:0xf bank_mask:0xf')
        l2 = a.newlab(name+'_v')
        a(f'v_cmp_ne_u32 vcc, 0x1fe, v{vt+3}\ns_cbranch_vccz {l2 if par else ok}')
        a(f's_mov_b32 s{sMode}, 1\ns_mov_b32 s4, 0\ns_and_b32 s2, s{sB}, 7\ns_lshr_b32 s3, s{sB}, 3\ns_lshl_b32 s98, s{wave}, 6\nv_add_u32 v0, s98, v{lane}\ns_waitcnt vmcnt(0) lgkmcnt(0)\ns_barrier\ns_branch {name}_start')
        if par:
            a.lab(l2)
            a(f'v_and_b32 v{vt+1}, 0x20202020, v{vt}\nv_cmp_ne_u32 vcc, 0, v{vt+1}\ns_sub_u32 s98, s98, 1\ns_cbranch_scc1 {END}\ns_cbranch_vccz {l0}')
            a(f'v_and_b32 v{vt+1}, 0x10101010, v{vt}\nv_cmp_ne_u32 vcc, 0, v{vt+1}\ns_cmp_lg_u64 vcc, 0\ns_cselect_b32 s4, 1, 0')
        a.lab(ok)
    gen_chain(a, name+'_f', END, verify=lambda a: verify(a, 56, 1, 7, True), kvflags=True, ksc=' sc1', **{k: v for k, v in kw.items() if k != 'wpf'})
    a.lab(name+'_safe')
    kw2 = {k: v for k, v in kw.items() if k not in ('stamps', 'light', 'prof', 'rt', 'wpf')}
    gen_chain(a, name+'_s', END, safe=True, kvflags=True, ksc=' sc1', **kw2)
    a.lab(name+'_worker')
    gs = Gemm(a, name+'_gs', NB=2, MB=2, S=8); gb = Gemm(a, name+'_gb')
    R, N = 76, 84
    sRelu, sF1, sF2, vZ = 46, 47, 48, 44
    light = kw.get('light')
    if light: a('s_mov_b32 s54, 0')
    a('s_load_dwordx4 s[60:63], s[0:1], 16\ns_load_dwordx2 s[64:65], s[0:1], 32\ns_load_dwordx2 s[66:67], s[0:1], 64\ns_load_dwordx2 s[68:69], s[0:1], 72\ns_load_dwordx2 s[72:73], s[0:1], 0')
    a(f's_mov_b32 s74, {M*2048}\ns_mov_b32 s75, 0x20000\ns_mov_b32 s15, 0x20000\ns_mov_b32 s92, s8\ns_mov_b32 s93, s9\ns_mov_b32 s95, 0x20000')
    a(f's_sub_u32 s5, s2, 4\ns_lshl_b32 s5, s5, 5\ns_add_u32 s5, s5, s3\ns_mov_b32 s49, s5\ns_mul_i32 s5, s5, {NJ*32}')
    a(f's_getpc_b64 s[70:71]'); a.lab(name+'_pc')
    a(f's_add_u32 s5, s5, {name}_jobs-{name}_pc\ns_add_u32 s70, s70, s5\ns_addc_u32 s71, s71, 0')
    a(f's_load_dwordx8 s[{R}:{R+7}], s[70:71], 0\ns_load_dwordx8 s[{N}:{N+7}], s[70:71], 32')
    a(f'v_mov_b32 v{vZ}, {OOB}\nv_cmp_eq_u32 vcc, 0, v0\nv_mov_b32 v{vZ+1}, 0\ns_nop 0\nv_cndmask_b32 v{vZ}, v{vZ}, v0, vcc')
    def target(g, r):
        l = [a.newlab(name+'_t') for _ in range(2)]
        a(f's_and_b32 s5, s{r}, 3\ns_mov_b32 s{g.sLdb}, 8192\ns_mov_b32 s14, {1024*8192}\ns_mov_b32 s12, s62\ns_mov_b32 s13, s63')
        a(f's_cmp_eq_u32 s5, 0\ns_cbranch_scc1 {l[0]}\ns_mov_b32 s12, s64\ns_mov_b32 s13, s65\ns_cmp_eq_u32 s5, 1\ns_cbranch_scc1 {l[0]}')
        a(f's_mov_b32 s12, s60\ns_mov_b32 s13, s61\ns_cmp_eq_u32 s5, 2\ns_cbranch_scc1 {l[0]}\ns_mov_b32 s12, s66\ns_mov_b32 s13, s67\ns_mov_b32 s{g.sLdb}, 7168\ns_mov_b32 s14, {1024*7168}')
        a.lab(l[0])
        a(f's_mov_b32 s{g.sXo}, s{r+1}\ns_mov_b32 s{g.sWn}, s{r+2}\ns_mov_b32 s94, {WS_SIZE}')
        g.setup()
    def nullhook(g):
        def h(a):
            l = a.newlab(name+'_h')
            a(f's_cmp_eq_u32 s{g.sCnt}, 1\ns_cbranch_scc0 {l}\ns_mov_b32 s94, 0\ns_mov_b32 s14, 0'); a.lab(l)
        return h
    def flags(a): a(f'buffer_store_dword v{vZ+1}, v{vZ}, s[8:11], s{sF1} offen sc1\nbuffer_store_dword v{vZ+1}, v{vZ}, s[8:11], s{sF2} offen sc1')
    def advance():
        for k in range(8): a(f's_mov_b32 s{R+k}, s{N+k}')
        a(f's_add_u32 s70, s70, 32\ns_addc_u32 s71, s71, 0\ns_load_dwordx8 s[{N}:{N+7}], s[70:71], 32')
    def wstamp(k):
        if light: a(f's_memrealtime s[52:53]\ns_waitcnt lgkmcnt(0)\ns_sub_u32 s52, s52, s50\nv_writelane_b32 v46, s52, {k}')
    def jstamp():
        if light: a(f's_memrealtime s[52:53]\ns_waitcnt lgkmcnt(0)\ns_sub_u32 s52, s52, s50\ns_add_u32 s54, s54, 1\ns_and_b32 s54, s54, 15\ns_mov_b32 m0, s54\ns_nop 3\nv_writelane_b32 v46, s52, m0')
    gs.init(); a('s_waitcnt lgkmcnt(0)')
    target(gs, R); a(f's_mov_b32 s{sRelu}, 0x80008000')
    for st in range(gs.S):
        for x in gs.dma(st)[gs.nxd:]: a(x)
    wpf = kw.get('wpf', 0)
    if wpf:
        a(f'v_lshrrev_b32 v36, 4, v0\nv_lshlrev_b32 v36, 13, v36\nv_and_b32 v37, 15, v0\nv_lshl_add_u32 v36, v37, 4, v36\nv_add_u32 v36, s{gs.sWn}, v36\ns_and_b32 s5, s3, 1\ns_mul_i32 s5, s5, {16*8192}\ns_add_u32 s5, s5, {256*8192}')
        for k in range(wpf): a(f'buffer_load_dwordx4 v[240:243], v36, s[12:15], s5 offen\ns_add_u32 s5, s5, {32*8192}')
    verify(a, 36, 1, gs.sWv)
    wstamp(8)
    for st in range(gs.S):
        for x in gs.dma(st)[:gs.nxd]: a(x)
    a('s_waitcnt vmcnt(0)\ns_barrier')
    for x in gs.reads(0, 0): a(x)
    a('.p2align 6'); a.lab(name+'_small')
    gs.trip(first=True, extra=10)
    a(f's_mov_b32 s{gs.sCnt}, 3')
    def smallhook(a):
        l = a.newlab(name+'_h')
        a(f's_cmp_eq_u32 s{gs.sCnt}, 1\ns_cbranch_scc0 {l}\ns_mov_b32 s94, 0\ns_mov_b32 s14, 0\ns_cmp_lt_u32 s{N}, {T_BIG}\ns_cbranch_scc0 {l}')
        target(gs, N); a.lab(l)
    gs.loop('0', smallhook)
    gs.epilogue_kb(R+3, sRelu, ' sc1')
    a(f's_mov_b32 s{sF1}, s{R+4}\ns_mov_b32 s{sF2}, s{R+5}\ns_waitcnt vmcnt(0)\ns_barrier'); flags(a)
    jstamp()
    advance()
    a(f's_cmp_lt_u32 s{R}, {T_BIG}\ns_waitcnt lgkmcnt(0)\ns_cbranch_scc1 {name}_small')
    gb.init(); a('s_waitcnt lgkmcnt(0)')
    target(gb, R); a(f's_mov_b32 s{gb.sNK}, 7\ns_mov_b32 s{sF1}, {OOB}\ns_mov_b32 s{sF2}, {OOB}')
    gb.prologue(zero=False)
    a(f's_mul_i32 s5, s49, 57344\nv_lshlrev_b32 v36, 4, v0\ns_mov_b32 s58, {3584*2048}\ns_mov_b32 s59, 0x20000')
    for m in range(2):
        a(f's_mov_b32 s56, s{66+2*m}\ns_mov_b32 s57, s{67+2*m}\ns_mov_b32 s6, s5')
        for k in range(16): a(f'buffer_load_dwordx4 v[240:243], v36, s[56:59], s6 offen' + ('\ns_add_u32 s6, s6, 4096' if k < 13 else ''))
    a('.p2align 6'); a.lab(name+'_big')
    gb.trip(first=True, extra=32, post=flags)
    a(f's_mov_b32 s{gb.sCnt}, 7')
    def chainhook(a):
        l, l2 = a.newlab(name+'_h'), a.newlab(name+'_h')
        a(f's_cmp_eq_u32 s{gb.sCnt}, 1\ns_cbranch_scc0 {l}\ns_mov_b32 s94, 0\ns_mov_b32 s14, 0\ns_and_b32 s5, s{N}, 0xf0\ns_cmp_eq_u32 s5, {T_BIG}\ns_cbranch_scc0 {l}')
        target(gb, N); a.lab(l)
    gb.loop('', chainhook)
    a(f's_and_b32 s5, s{R}, 3\ns_cmp_eq_u32 s5, 3\ns_cselect_b32 s{sRelu}, 0, 0x80008000')
    gb.epilogue_kb(R+3, sRelu, ' sc1')
    a(f's_mov_b32 s{sF1}, s{R+4}\ns_mov_b32 s{sF2}, s{R+5}')
    if light: a(f's_memrealtime s[52:53]\ns_waitcnt lgkmcnt(0)\ns_sub_u32 s52, s52, s50\ns_add_u32 s54, s54, 1\ns_and_b32 s54, s54, 15\ns_mov_b32 m0, s54\ns_nop 3\nv_writelane_b32 v46, s52, m0')
    advance()
    a(f's_and_b32 s5, s{R}, 0xf0\ns_cmp_eq_u32 s5, {T_BIG}\ns_waitcnt lgkmcnt(0)\ns_cbranch_scc1 {name}_big')
    a('s_waitcnt vmcnt(0)\ns_barrier'); flags(a)
    gs.init()
    l0, l1 = a.newlab(name+'_d'), a.newlab(name+'_d')
    a(f'v_lshlrev_b32 v36, 2, v1\nv_mov_b32 v37, {OOB}\nv_cmp_gt_u32 vcc, 14, v1\ns_mov_b32 s98, {1<<22}\ns_nop 0\nv_cndmask_b32 v36, v37, v36, vcc')
    a.lab(l0)
    a(f'buffer_load_dword v37, v36, s[8:11], s{R+6} offen sc1\ns_waitcnt vmcnt(0)\nv_cmp_eq_u32 vcc, -1, v37\ns_cbranch_vccz {l1}\ns_sub_u32 s98, s98, 1\ns_cbranch_scc1 {END}\ns_sleep 4\ns_branch {l0}')
    a.lab(l1)
    wstamp(9)
    a(f's_mov_b32 s12, s68\ns_mov_b32 s13, s69\ns_mov_b32 s14, {3584*2048}\ns_mov_b32 s{gs.sLdb}, 2048\ns_mov_b32 s{gs.sXo}, s{R+1}\ns_mov_b32 s{gs.sWn}, s{R+2}\ns_mov_b32 s94, {WS_SIZE}\ns_mov_b32 s{gs.sNK}, 14')
    gs.setup(); gs.prologue(); gs.loop('2', nullhook(gs))
    gs.epilogue_part(R+3, R+7, 72)
    if light:
        a('s_waitcnt vmcnt(0)'); wstamp(10)
        a(f's_lshl_b32 s5, s49, 6\ns_add_u32 s5, s5, {OFF_STAMP + 0x100000}\nv_lshlrev_b32 v36, 2, v0\nv_mov_b32 v37, {OOB}\nv_cmp_gt_u32 vcc, 16, v0\ns_nop 1\nv_cndmask_b32 v36, v37, v36, vcc\nbuffer_store_dword v46, v36, s[8:11], s5 offen')
    a.lab(END); a('s_endpgm')
    a('.p2align 6'); a.lab(name+'_jobs')
    for L in schedule():
        for r in L + [[T_END]+[0]*7]*0: a('.long ' + ', '.join(f'{x:#x}' for x in r))
    a('.long ' + ', '.join(['0xff'] + ['0']*15))
    return a.text()

def gen_final(name):
    a = Asm(); a(khead(name)); END = name+'_end'
    g = Gemm(a, name, NB=2, MB=2, S=8)
    a(f's_cmp_ge_u32 s2, 128\ns_cbranch_scc1 {END}')
    a(f's_load_dwordx2 s[8:9], s[0:1], 96\ns_mov_b32 s10, {WS_SIZE}\ns_mov_b32 s11, 0x20000\ns_load_dwordx2 s[92:93], s[0:1], 96\ns_mov_b32 s94, {WS_SIZE}\ns_mov_b32 s95, 0x20000')
    a(f's_load_dwordx2 s[12:13], s[0:1], 40\ns_mov_b32 s14, {4096*2048}\ns_mov_b32 s15, 0x20000')
    a(f's_load_dwordx2 s[16:17], s[0:1], 80\ns_mov_b32 s18, {M*2048}\ns_mov_b32 s19, 0x20000')
    g.init()
    a(f's_and_b32 s40, s2, 15\ns_lshr_b32 s41, s2, 4\ns_lshl_b32 s42, s40, 13\ns_add_u32 s{g.sXo}, s42, {OFF_O}\ns_lshl_b32 s{g.sWn}, s41, 8\ns_mov_b32 s{g.sLdb}, 2048\ns_mov_b32 s{g.sNK}, 16')
    a(f's_lshl_b32 s47, s40, 18\ns_add_u32 s47, s47, s{g.sWn}\ns_lshl_b32 s48, s47, 1\ns_add_u32 s48, s48, {OFF_PART}\ns_waitcnt lgkmcnt(0)')
    g.setup(); g.prologue(); g.loop('')
    g.epilogue_fin(47, 48)
    a.lab(END); a('s_endpgm')
    return a.text(), g.lds

def build(**kw):
    hdr = open('cdna_kernels/%s.s.ref' % KN).read().split('\n')
    hdr = [l for l in hdr[:hdr.index('.text')] if l.startswith(';') and '@launch' not in l]
    gf, lf = gen_final('final_kernel'); at, nv = gen_attn_kernel('attn_kernel')
    L = [('main_kernel', 256, 131072), ('attn_kernel', 512, 40960), ('final_kernel', 128, lf)]
    s = '\n'.join(hdr) + '\n' + ''.join(f'; @launch kernel={k} grid=({n},1,1) block=(256,1,1) lds={l}\n' for k, n, l in L)
    s += '.amdgcn_target "amdgcn-amd-amdhsa--gfx950"\n.text\n'
    s += at + gf + gen_main('main_kernel', **kw)
    s += '.section .rodata,"a"\n'
    for k, v, ac, sg in (('main_kernel', 512, 256, 102), ('attn_kernel', 168, 168, 96), ('final_kernel', 512, 256, 102)):
        s += '.p2align 6\n' + kdesc(k, v, ac, sg)
    return s, L
if __name__ == '__main__':
    s, L = build()
    open('cdna_kernels/%s.s' % KN, 'w').write(s)
    print(len(s))
```

```python
from asmlib import *
from layout import *
import struct, math
def f32(x): return struct.unpack('<I', struct.pack('<f', x))[0]

class Attn:
    def __init__(self, a, name, v0=1, s0=46, SRD_WS=8):
        self.a, self.name, self.WS = a, name, f's[{SRD_WS}:{SRD_WS+3}]'
        n = [v0]
        def V(k=1, al=1):
            n[0] = (n[0]+al-1)//al*al; r = n[0]; n[0] += k; return r
        self.vL = V(); self.vFr = V(); self.vMr = V(); self.vDm = V(); self.vTr = V(); self.vTm = V(); self.vOw = V()
        self.t = [V() for _ in range(4)]
        self.vQ = V(32, 4); self.vK = V(32, 4); self.vKm = V(16, 4)
        self.vS = V(20, 4)
        self.vP = V(16, 4)
        self.vOne = V(8, 4); self.vLs = V(8, 4)
        self.vVt = self.vQ; self.vVm = self.vK
        self.vO = V(16, 4); self.vOut = V(8, 4)
        self.nv = n[0]
        self.sSeg, self.sHead, self.sLds, self.sCl = s0, s0+1, s0+2, s0+3
        self.sT = list(range(s0+4, s0+12)); self.mDiag = [s0+12+2*r for r in range(4)]; self.mLo = s0+20
        assert self.mDiag[0] % 2 == 0
    def init(self):
        a, t, L = self.a, self.t, self.vL
        a(f'v_and_b32 v{L}, 63, v0')
        a(f'v_and_b32 v{t[0]}, 15, v{L}\nv_lshrrev_b32 v{t[1]}, 4, v{L}\nv_lshlrev_b32 v{t[2]}, 4, v{t[1]}\nv_lshl_add_u32 v{self.vFr}, v{t[0]}, 6, v{t[2]}')
        for r in range(4):
            a(f'v_lshl_add_u32 v{t[3]}, v{t[1]}, 2, {r}\nv_cmp_le_u32 s[{self.mDiag[r]}:{self.mDiag[r]+1}], v{t[3]}, v{t[0]}')
        a(f'v_cmp_gt_u32 s[{self.mLo}:{self.mLo+1}], 2, v{t[1]}')
        a(f'v_mov_b32 v{t[3]}, {OOB}\nv_cmp_gt_u32 vcc, 8, v{t[0]}\ns_nop 1\nv_cndmask_b32 v{self.vMr}, v{t[3]}, v{self.vFr}, vcc')
        a(f'v_lshrrev_b32 v{t[3]}, 5, v{L}\nv_lshlrev_b32 v{t[3]}, 15, v{t[3]}\nv_and_b32 v{t[2]}, 31, v{L}\nv_lshl_add_u32 v{self.vDm}, v{t[2]}, 4, v{t[3]}')
        a(f'v_bfe_u32 v{t[2]}, v{L}, 2, 2\nv_lshl_add_u32 v{t[2]}, v{t[1]}, 2, v{t[2]}\nv_lshlrev_b32 v{t[2]}, 6, v{t[2]}\nv_and_b32 v{t[3]}, 3, v{L}\nv_lshl_add_u32 v{self.vTr}, v{t[3]}, 3, v{t[2]}')
        a(f'v_and_b32 v{self.vTm}, 0x1ff, v{self.vTr}\nv_add_u32 v{self.vTm}, 8192, v{self.vTm}')
        a(f'v_add_u32 v{self.vTr}, s{self.sLds}, v{self.vTr}\nv_add_u32 v{self.vTm}, s{self.sLds}, v{self.vTm}')
        a(f'v_bfe_u32 v{t[2]}, v{L}, 4, 1\nv_lshlrev_b32 v{t[2]}, 5, v{t[2]}\nv_bfe_u32 v{t[3]}, v{L}, 5, 1\nv_lshl_add_u32 v{t[2]}, v{t[3]}, 4, v{t[2]}\nv_lshl_add_u32 v{self.vOw}, v{t[0]}, 6, v{t[2]}')
        for r in range(4): a(f'v_mov_b32 v{self.vOne+r}, 0x3f803f80')
        for r in (self.vP+6, self.vP+7, self.vP+14, self.vP+15, self.vP+2, self.vP+3): a(f'v_mov_b32 v{r}, 0')
        a(f's_mov_b32 s{self.sCl}, {f32(128**-0.5*math.log2(math.e)):#x}')
    def task(self, ldsc='', stsc='', wait_mem=None):
        a, t, sT, WS = self.a, self.t, self.sT, self.WS
        mf = lambda D, A, B, C: a(f'v_mfma_f32_16x16x32_bf16 {vr(D,4)}, {vr(A,4)}, {vr(B,4)}, {vr(D,4) if C else 0}')
        a(f's_lshl_b32 s{sT[0]}, s{self.sHead}, 19\ns_lshl_b32 s{sT[1]}, s{self.sSeg}, 11\ns_add_u32 s{sT[0]}, s{sT[0]}, s{sT[1]}')
        a(f's_lshl_b32 s{sT[1]}, s{self.sHead}, 17\ns_lshl_b32 s{sT[2]}, s{self.sSeg}, 9\ns_add_u32 s{sT[1]}, s{sT[1]}, s{sT[2]}')
        a(f'v_lshlrev_b32 v{t[0]}, 4, v{self.vL}')
        for cc in range(4):
            a(f's_add_u32 s{sT[2]}, s{sT[0]}, {OFF_Q + cc*M*64}\ns_add_u32 s{sT[3]}, s{sT[0]}, {OFF_K + cc*M*64}')
            for b in range(2): a(f'buffer_load_dwordx4 {vr(self.vQ+(b*4+cc)*4,4)}, v{self.vFr}, {WS}, s{sT[2]} offen offset:{b*1024}{ldsc}')
            for b in range(2): a(f'buffer_load_dwordx4 {vr(self.vK+(b*4+cc)*4,4)}, v{self.vFr}, {WS}, s{sT[3]} offen offset:{b*1024}{ldsc}')
        for cc in range(4):
            a(f's_add_u32 m0, s{self.sLds}, {cc*2048}\ns_add_u32 s{sT[2]}, s{sT[0]}, {OFF_V + cc*M*64}')
            for b in range(2): a(f'buffer_load_dwordx4 v{t[0]}, {WS}, s{sT[2]} offen offset:{b*1024}{ldsc} lds')
        S = self.vS
        if wait_mem: wait_mem(a)
        for cc in range(4):
            a(f's_add_u32 s{sT[4]}, s{sT[1]}, {OFF_KM + cc*32768}\nbuffer_load_dwordx4 {vr(self.vKm+cc*4,4)}, v{self.vMr}, {WS}, s{sT[4]} offen{ldsc}')
        for k in range(2):
            a(f's_add_u32 m0, s{self.sLds}, {8192 + k*1024}\ns_add_u32 s{sT[2]}, s{sT[1]}, {OFF_VM + k*65536}')
            a(f'buffer_load_dwordx4 v{self.vDm}, {WS}, s{sT[2]} offen{ldsc} lds')
        a('s_waitcnt vmcnt(14)')
        for cc in range(4):
            mf(S+4, self.vK+cc*4, self.vQ+cc*4, cc); mf(S+12, self.vK+cc*4, self.vQ+16+cc*4, cc); mf(S+16, self.vK+16+cc*4, self.vQ+16+cc*4, cc)
        for cc in range(4):
            a(f's_waitcnt vmcnt({5-cc})')
            mf(S, self.vKm+cc*4, self.vQ+cc*4, cc); mf(S+8, self.vKm+cc*4, self.vQ+16+cc*4, cc)
        a('s_waitcnt vmcnt(0)')
        for eb in range(8):
            for b in range(2): a(f'ds_read_b64_tr_b16 {vr(self.vVt+eb*4+2*b,2)}, v{self.vTr} offset:{(eb>>1)*2048 + b*1024 + (eb&1)*32}')
            if eb == 3: a('s_waitcnt lgkmcnt(4)')
        a('s_waitcnt lgkmcnt(4)')
        for eb in range(8):
            a(f'ds_read_b64_tr_b16 {vr(self.vVm+eb*4,2)}, v{self.vTm} offset:{(eb>>1)*512 + (eb&1)*32}\nv_mov_b32 v{self.vVm+eb*4+2}, 0\nv_mov_b32 v{self.vVm+eb*4+3}, 0')
        a(f'v_mov_b32 v{t[3]}, 0xff800000')
        for qb in range(2):
            B = S + 8*qb; n = 8 + 4*qb; dg = B + n - 4
            for r in range(4):
                a(f'v_cndmask_b32 v{B+r}, v{t[3]}, v{B+r}, s[{self.mLo}:{self.mLo+1}]\nv_cndmask_b32 v{dg+r}, v{t[3]}, v{dg+r}, s[{self.mDiag[r]}:{self.mDiag[r]+1}]')
            a(f'v_max3_f32 v{t[0]}, v{B}, v{B+1}, v{B+2}')
            for k in range(3, n-1, 2): a(f'v_max3_f32 v{t[0]}, v{t[0]}, v{B+k}, v{B+k+1}')
            a(f'v_max_f32 v{t[0]}, v{t[0]}, v{B+n-1}')
            a(f'v_mov_b32 v{t[1]}, v{t[0]}\ns_nop 1\nv_permlane16_swap_b32 v{t[0]}, v{t[1]}\nv_max_f32 v{t[0]}, v{t[0]}, v{t[1]}')
            a(f'v_mov_b32 v{t[1]}, v{t[0]}\ns_nop 1\nv_permlane32_swap_b32 v{t[0]}, v{t[1]}\nv_max_f32 v{t[0]}, v{t[0]}, v{t[1]}')
            a(f'v_mul_f32 v{t[0]}, s{self.sCl}, v{t[0]}')
            for k in range(n): a(f'v_fma_f32 v{B+k}, v{B+k}, s{self.sCl}, -v{t[0]}')
            for k in range(n): a(f'v_exp_f32 v{B+k}, v{B+k}')
            P = self.vP + 8*qb
            a('s_nop 0')
            for k in range(2): a(f'v_cvt_pk_bf16_f32 v{P+4+k}, v{B+2*k}, v{B+2*k+1}')
            for k in range(2 + 2*qb): a(f'v_cvt_pk_bf16_f32 v{P+k}, v{B+4+2*k}, v{B+5+2*k}')
        a('s_nop 1')
        for qb in range(2):
            mf(self.vLs+4*qb, self.vOne, self.vP+8*qb, 0); mf(self.vLs+4*qb, self.vOne, self.vP+8*qb+4, 1)
        a('s_waitcnt lgkmcnt(0)')
        a(f's_add_u32 s{sT[0]}, s{sT[0]}, {OFF_O}')
        for cc in range(4):
            for qb in range(2):
                for nh in range(2):
                    D = self.vO + qb*8 + nh*4; eb = 2*cc+nh
                    mf(D, self.vVt+eb*4, self.vP+8*qb, 0); mf(D, self.vVm+eb*4, self.vP+8*qb+4, 1)
            if cc == 0: a(f'v_rcp_f32 v{t[0]}, v{self.vLs}\nv_rcp_f32 v{t[1]}, v{self.vLs+4}')
            for qb in range(2):
                D = self.vO + qb*8; O = self.vOut + qb*4
                if qb == 0: a('s_nop 3')
                for r in range(8): a(f'v_mul_f32 v{D+r}, v{D+r}, v{t[qb]}')
                for r in range(4): a(f'v_cvt_pk_bf16_f32 v{O+r}, v{D+2*r}, v{D+2*r+1}')
                a(f's_nop 1\nv_permlane16_swap_b32 v{O}, v{O+2}\nv_permlane16_swap_b32 v{O+1}, v{O+3}')
                a(f'buffer_store_dwordx4 {vr(O,4)}, v{self.vOw}, {WS}, s{sT[0]} offen offset:{qb*1024}{stsc}')
            a(f's_add_u32 s{sT[0]}, s{sT[0]}, {M*64}')

def gen_attn_kernel(name):
    a = Asm(); a(khead(name)); END = name+'_end'
    at = Attn(a, name)
    a(f's_cmp_ge_u32 s2, 512\ns_cbranch_scc1 {END}')
    a(f's_load_dwordx2 s[8:9], s[0:1], 96\ns_mov_b32 s10, {WS_SIZE}\ns_mov_b32 s11, 0x20000')
    a(f'v_lshrrev_b32 v2, 6, v0\ns_nop 0\nv_readfirstlane_b32 s3, v2\ns_mul_i32 s{at.sLds}, s3, 10240')
    a(f's_lshl_b32 s4, s2, 2\ns_add_u32 s4, s4, s3\ns_and_b32 s{at.sHead}, s4, 31\ns_lshr_b32 s{at.sSeg}, s4, 5')
    at.init(); a('s_waitcnt lgkmcnt(0)'); at.task()
    a.lab(END); a('s_endpgm')
    return a.text(), at.nv
```

```python
from asmlib import *
from layout import *
import struct, math

RS, MS = 128, 1040
WSTR = 3*MS
LDS_P   = 19456
LDS_Z   = LDS_P + 1024
LDS_TOK = 21504
LDS_V   = LDS_TOK + 20480
CHAIN_LDS = 131072
assert CHAIN_LDS <= 163840

def gen_chain(a, name, END, nsteps=63, safe=False, stamps=False, prof=0, light=False, verify=None,
              cpos=28, nb=3, dfill=1, ksc='', abl=''):
    LS = ' sc1' if safe else ''
    sX, sSlot, sPar, sH, sC, sW = 2, 3, 4, 5, 6, 7
    SRD_WS, SRD_IN = 8, 12
    sD = [16,17,18]; sA = [19,20,21]; sA2 = 22; sB = [23,24,25]; sCr = [26,27,28]
    sKT = [29,30,31]
    sStep, sTO, sKM, sCl = 32, 33, 34, 35
    sT = list(range(36, 48))
    sXn, sVT, sTR, sTok, sXb, sPf = 48, 49, 50, 51, 52, 53
    sStamp = 56
    n = [1]
    def V(k=1, al=1):
        n[0] = (n[0]+al-1)//al*al; r = n[0]; n[0] += k; return r
    vL = V(); vL16 = V()
    vDrd, vDwr, vBrd, vBwr, vCrd, vCwr = [V() for _ in range(6)]
    vAsr, vAmr, vAvr, vAw, vAw2, vKMw = [V() for _ in range(6)]
    vLw = [V() for _ in range(6)]; vLr, vPw, vIdxM = V(), V(), V()
    vPr = [V() for _ in range(6)]
    vIdx, vKt, vVt = [V() for _ in range(3)]
    t = [V() for _ in range(5)] + [0]
    vFl = V(2,2)
    vSel = V(4,4); vOneT = V(4,4); vOneM = V(4,4); vSent = V(4,4)
    vMem = V(16,4); acc = V(24,4); vX = V(32,4); vXo = V(4,4)
    vKtf = V(8,4); vS = V(12,4); accW = V(16,4); vWm = V(16,4); vWt = V(16,4)
    vBlo = V(8,4); vBhi = V(8,4); vOut = V(4,4); vRa = V(4,4)
    vVtf = V(32,4)
    assert n[0] <= 256, n[0]
    vLs = vS+8; vF = vS; accT = vX; vRd = vMem; vVm = vMem
    vI, vHB, vG = vVtf, vVtf+1, vVtf+2
    WSD = f's[{SRD_WS}:{SRD_WS+3}]'; IND = f's[{SRD_IN}:{SRD_IN+3}]'
    aW = lambda mat, ks, eb: mat*64 + ks*16 + eb*8
    aO = lambda n2, b: 192 + n2*32 + b*8
    def stamp(k, p=0):
        if stamps and (p == prof or k == 0): a(f's_mem{"real" if rt else ""}time s[{sStamp+2*k}:{sStamp+2*k+1}]')
    mfs = lambda D, A, B, C: f'v_mfma_f32_16x16x32_bf16 {vr(D,4)}, {A}, {vr(B,4)}, {vr(D,4) if C else 0}'
    mf = lambda D, A, B, C: a(mfs(D, vr(A,4), B, C))
    def fail_check(k=0):
        if stamps: a(f's_add_u32 s{72+k}, s{72+k}, 1')
        a(f's_sub_u32 s{sTO}, s{sTO}, 1\ns_cbranch_scc1 {END}')
    chk4 = lambda r0, tt: [f'v_max3_u32 v{tt}, v{r0}, v{r0+1}, v{r0+2}', f'v_max_u32 v{tt}, v{tt}, v{r0+3}', f'v_cmp_eq_u32 vcc, -1, v{tt}']
    chk8 = lambda R: f'v_max3_u32 v{t[0]}, v{R}, v{R+1}, v{R+2}\nv_max3_u32 v{t[1]}, v{R+3}, v{R+4}, v{R+5}\nv_max3_u32 v{t[0]}, v{t[0]}, v{R+6}, v{R+7}\nv_max_u32 v{t[0]}, v{t[0]}, v{t[1]}\nv_cmp_eq_u32 vcc, -1, v{t[0]}'
    pk = lambda d, x, y: f'v_pk_add_f32 {vr(d,2)}, {vr(x,2)}, {vr(y,2)}'
    DPP8 = 'row_ror:8 row_mask:0xf bank_mask:0xf'

    if light: a('s_mov_b32 s80, s50')
    a(f's_lshr_b32 s{sH}, s{sSlot}, 2\ns_lshl_b32 s{sT[0]}, s{sX}, 3\ns_add_u32 s{sH}, s{sH}, s{sT[0]}\ns_and_b32 s{sC}, s{sSlot}, 3')
    a(f'v_lshrrev_b32 v{t[0]}, 6, v0\ns_nop 0\nv_readfirstlane_b32 s{sW}, v{t[0]}')
    a(f's_load_dwordx2 s[{SRD_WS}:{SRD_WS+1}], s[0:1], 96\ns_load_dwordx8 s[60:67], s[0:1], 16')
    a(f's_mov_b32 s{SRD_WS+2}, {WS_SIZE}\ns_mov_b32 s{SRD_WS+3}, 0x20000\ns_mov_b32 s{SRD_IN+2}, {8*MBY}\ns_mov_b32 s{SRD_IN+3}, 0x20000')
    a(f'v_and_b32 v{vL}, 63, v0\nv_and_b32 v{vI}, 7, v0\nv_bfe_u32 v{vHB}, v0, 3, 1\nv_bfe_u32 v{vG}, v0, 4, 2\nv_lshlrev_b32 v{vL16}, 4, v{vL}')
    a(f's_lshl_b32 s{sT[0]}, s{sW}, 15')
    w0, w1, w2, w3 = vX, vX+1, vX+2, vX+3
    a(f'v_lshrrev_b32 v{w2}, 3, v{vL}\nv_lshlrev_b32 v{w0}, 13, v{w2}\nv_lshl_add_u32 v{w0}, v{vI}, 4, v{w0}\nv_and_b32 v{t[1]}, 3, v{vL}')
    a(f's_lshl_b32 s{sT[1]}, s{sW}, 21\ns_lshl_b32 s{sT[2]}, s{sH}, 8\ns_add_u32 s{sT[1]}, s{sT[1]}, s{sT[2]}\ns_lshr_b32 s{sT[2]}, s{sC}, 1\ns_lshl_b32 s{sT[2]}, s{sT[2]}, 7\ns_add_u32 s{sT[1]}, s{sT[1]}, s{sT[2]}\nv_add_u32 v{w0}, s{sT[1]}, v{w0}')
    a(f'v_bfe_u32 v{t[0]}, v{vL}, 2, 2\nv_lshl_add_u32 v{t[0]}, v{vG}, 3, v{t[0]}')
    a(f's_and_b32 s{sT[2]}, s{sC}, 1\ns_lshl_b32 s{sT[2]}, s{sT[2]}, 6\ns_add_u32 s{sT[2]}, s{sT[2]}, s{sT[0]}')
    a(f'v_lshlrev_b32 v{w1}, 7, v{t[0]}\nv_lshl_add_u32 v{w3}, v{t[1]}, 5, v{w1}\nv_add_u32 v{w3}, s{sT[0]}, v{w3}\nv_lshl_add_u32 v{w1}, v{t[1]}, 3, v{w1}\nv_add_u32 v{w1}, s{sT[2]}, v{w1}')
    a(f'v_lshlrev_b32 v{w2}, 11, v{w2}\nv_lshl_add_u32 v{w2}, v{vI}, 4, v{w2}')
    a(f's_lshl_b32 s{sT[1]}, s{sH}, 18\ns_lshl_b32 s{sT[2]}, s{sC}, 9\ns_add_u32 s{sT[1]}, s{sT[1]}, s{sT[2]}\ns_lshl_b32 s{sT[2]}, s{sW}, 7\ns_add_u32 s{sT[1]}, s{sT[1]}, s{sT[2]}\nv_add_u32 v{w2}, s{sT[1]}, v{w2}')
    order = [('qkvo'.index(ch), k) for ch in word for k in range(2 if ch == 'o' else 4)]
    NP = len(order)
    def wdma(i):
        mat, ks = order[i]
        a(f's_mov_b32 s{SRD_IN}, s{60+2*mat}\ns_mov_b32 s{SRD_IN+1}, s{61+2*mat}')
        for j in range(8):
            so = (ks*8+j)*(8*8192 if mat < 3 else 8*2048)
            a(f's_add_u32 m0, s{sT[0]}, {(i%4)*8192 + j*1024}\ns_mov_b32 s{sT[3]}, {so}\nbuffer_load_dwordx4 v{w0 if mat < 3 else w2}, {IND}, s{sT[3]} offen lds')
    def wread(i):
        mat, ks = order[i]; base = (i % 4)*8192
        for b in range(2 if mat < 3 else 4):
            for u in range(2):
                for mm in range(2):
                    if mat < 3: a(f'ds_read_b64_tr_b16 {ar(aW(mat,ks,b)+u*4+mm*2,2)}, v{w1} offset:{base + (u*32+mm*4)*128 + b*32}')
                    else: a(f'ds_read_b64_tr_b16 {ar(aO(ks,b)+u*4+mm*2,2)}, v{w3} offset:{base + (u*32+mm*4)*128 + (b>>1)*16 + (b&1)*8}')
            a('s_waitcnt lgkmcnt(8)')
        a('s_waitcnt lgkmcnt(0)')
    a('s_waitcnt lgkmcnt(0)')
    for i in range(4): wdma(i)
    if early: early(a)
    a(f'v_mov_b32 v{t[5]}, {OOB}')
    sJ = sT[6]
    a(f's_mul_i32 s{sT[4]}, s{sX}, {3*16384}\ns_add_u32 s{sT[4]}, s{sT[4]}, {OFF_D}')
    a(f's_lshl_b32 s{sT[5]}, s{sW}, 12\ns_add_u32 s{sT[5]}, s{sT[5]}, s{sT[4]}\nv_add_u32 v{vDrd}, s{sT[5]}, v{vL16}')
    a(f's_lshl_b32 s{sJ}, s{sSlot}, 2\ns_add_u32 s{sJ}, s{sJ}, s{sW}')
    a(f's_lshr_b32 s{sT[5]}, s{sJ}, 1\ns_lshl_b32 s{sT[5]}, s{sT[5]}, 8\ns_and_b32 s{sT[7]}, s{sJ}, 1\ns_lshl_b32 s{sT[7]}, s{sT[7]}, 3\ns_add_u32 s{sT[5]}, s{sT[5]}, s{sT[7]}\ns_add_u32 s{sT[5]}, s{sT[5]}, s{sT[4]}')
    a(f'v_lshlrev_b32 v{t[0]}, 5, v{vI}\nv_lshl_add_u32 v{t[0]}, v{vHB}, 4, v{t[0]}\nv_lshl_add_u32 v{t[0]}, v{vG}, 2, v{t[0]}\nv_add_u32 v{vDwr}, s{sT[5]}, v{t[0]}')
    a(f'v_cmp_gt_u32 vcc, 2, v{vG}\ns_nop 1\nv_cndmask_b32 v{vDwr}, v{t[5]}, v{vDwr}, vcc')
    def nearmap(r):
        a(f'v_lshrrev_b32 v{t[1]}, 13, v{r}\nv_lshlrev_b32 v{t[1]}, 14, v{t[1]}\nv_and_b32 v{r}, 8191, v{r}\nv_add_u32 v{r}, v{r}, v{t[1]}')
        a(f's_lshl_b32 s{sT[7]}, s{sPar}, 13\ns_add_u32 s{sT[7]}, s{sT[7]}, {OFF_C}\nv_add_u32 v{r}, s{sT[7]}, v{r}')
    a(f's_mul_i32 s{sT[8]}, s{sX}, {3*131072}\ns_add_u32 s{sT[8]}, s{sT[8]}, {OFF_B}\ns_lshl_b32 s{sT[5]}, s{sJ}, 10\ns_add_u32 s{sT[9]}, s{sT[5]}, s{sT[8]}\nv_add_u32 v{vBrd}, s{sT[9]}, v{vL16}')
    a(f'v_and_b32 v{t[0]}, 1, v{vG}\nv_lshl_add_u32 v{t[0]}, v{t[0]}, 3, v{vI}\nv_lshlrev_b32 v{t[4]}, 4, v{t[0]}\nv_add_u32 v{t[0]}, s{sT[5]}, v{t[4]}')
    a(f'v_lshl_add_u32 v{vCrd}, v{vHB}, 8, v{t[0]}\ns_lshl_b32 s{sT[9]}, s{sX}, 8\nv_add_u32 v{vCwr}, s{sT[9]}, v{t[0]}')
    if c2: a(f'v_lshl_add_u32 v{vCwr}, v{vHB}, 17, v{vCwr}')
    if cmulti:
        a(f's_lshl_b32 s{sT[9]}, s{sX}, 17\nv_add_u32 v{vCrd}, s{sT[9]}, v{vCrd}\nv_lshrrev_b32 v{t[1]}, 1, v{vG}\nv_lshl_add_u32 v{t[1]}, v{t[1]}, 1, v{vHB}\nv_lshl_add_u32 v{vCwr}, v{t[1]}, 17, v{vCwr}')
    a(f'v_lshl_add_u32 v{t[0]}, v{vG}, 1, v{vHB}\ns_lshl_b32 s{sT[5]}, s{sC}, 5\ns_lshl_b32 s{sT[7]}, s{sW}, 3\ns_add_u32 s{sT[5]}, s{sT[5]}, s{sT[7]}\nv_add_u32 v{t[0]}, s{sT[5]}, v{t[0]}')
    a(f'v_lshlrev_b32 v{t[0]}, 10, v{t[0]}\nv_lshl_add_u32 v{t[0]}, v{vI}, 4, v{t[0]}\ns_and_b32 s{sT[5]}, s{sH}, 7\ns_lshl_b32 s{sT[5]}, s{sT[5]}, 7\ns_add_u32 s{sT[5]}, s{sT[5]}, s{sT[8]}\nv_add_u32 v{vBwr}, s{sT[5]}, v{t[0]}')
    a(f's_lshl_b32 s{sT[5]}, s{sH}, 13\ns_add_u32 s{sT[5]}, s{sT[5]}, {OFF_A}\ns_lshl_b32 s{sT[7]}, s{sC}, 11\ns_add_u32 s{sT[7]}, s{sT[7]}, s{sT[5]}')
    a(f'v_add_u32 v{vAsr}, s{sT[5]}, v{vL16}\nv_add_u32 v{t[4]}, 1024, v{t[4]}\nv_lshl_add_u32 v{vAmr}, v{vHB}, 11, v{t[4]}\nv_add_u32 v{vAmr}, s{sT[5]}, v{vAmr}')
    a(f'v_add_u32 v{vAw2}, s{sT[7]}, v{t[4]}\nv_and_b32 v{t[1]}, 0x28, v{vL}\nv_cmp_eq_u32 vcc, 0x20, v{t[1]}\ns_nop 1\nv_cndmask_b32 v{vAw2}, v{t[5]}, v{vAw2}, vcc')
    a(f'v_and_b32 v{t[0]}, 1, v{vG}\nv_lshl_add_u32 v{t[0]}, v{t[0]}, 1, v{vHB}\nv_lshlrev_b32 v{t[0]}, 4, v{t[0]}\nv_lshl_add_u32 v{t[0]}, v{vI}, 6, v{t[0]}')
    a(f'v_lshrrev_b32 v{t[1]}, 1, v{vG}\nv_lshl_add_u32 v{t[0]}, v{t[1]}, 11, v{t[0]}\nv_add_u32 v{t[0]}, 1536, v{t[0]}\nv_add_u32 v{vAvr}, s{sT[5]}, v{t[0]}')
    a(f'v_lshlrev_b32 v{t[0]}, 4, v{vG}\nv_lshl_add_u32 v{t[0]}, v{vI}, 6, v{t[0]}')
    sKB = sT[8]
    a(f's_lshl_b32 s{sKB}, s{sH}, 2\ns_add_u32 s{sKB}, s{sKB}, s{sC}\ns_lshl_b32 s{sT[9]}, s{sKB}, 15')
    lw0, lw1 = a.newlab(name+'_p'), a.newlab(name+'_p')
    a(f'v_cmp_eq_u32 vcc, 0, v{vHB}\ns_cmp_eq_u32 s{sW}, 0\ns_cbranch_scc1 {lw0}')
    a(f'v_mov_b32 v{vAw2}, {OOB}')
    a(f'v_add_u32 v{vAw}, 1536, v{t[0]}\nv_add_u32 v{vAw}, s{sT[7]}, v{vAw}\nv_cndmask_b32 v{vAw}, v{t[5]}, v{vAw}, vcc')
    a(f's_add_u32 s{sT[10]}, s{sT[9]}, {OFF_VM}\nv_add_u32 v{vKMw}, s{sT[10]}, v{t[0]}\nv_cndmask_b32 v{vKMw}, v{t[5]}, v{vKMw}, vcc\ns_branch {lw1}')
    a.lab(lw0)
    a(f'v_add_u32 v{vAw}, s{sT[7]}, v{vL16}\ns_add_u32 s{sT[10]}, s{sT[9]}, {OFF_KM}\nv_add_u32 v{vKMw}, s{sT[10]}, v{t[0]}\nv_cndmask_b32 v{vKMw}, v{vKMw}, v{t[5]}, vcc')
    a.lab(lw1)
    lk = a.newlab(name+'_p')
    a(f's_bitcmp1_b32 s{sW}, 0\ns_cbranch_scc0 {lk}\nv_mov_b32 v{vKMw}, {OOB}'); a.lab(lk)
    a(f'v_and_b32 v{t[0]}, 15, v{vL}\nv_lshlrev_b32 v{t[0]}, 6, v{t[0]}\nv_lshl_add_u32 v{t[0]}, v{vG}, 4, v{t[0]}')
    a(f's_lshl_b32 s{sT[9]}, s{sKB}, 17\ns_add_u32 s{sT[9]}, s{sT[9]}, {OFF_K}\nv_add_u32 v{vKt}, s{sT[9]}, v{t[0]}')
    a(f's_lshl_b32 s{sT[9]}, s{sH}, 19\ns_add_u32 s{sT[9]}, s{sT[9]}, {OFF_V}\nv_add_u32 v{vVt}, s{sT[9]}, v{t[0]}')
    a(f's_mul_i32 s{sT[9]}, s{sW}, {WSTR}\nv_lshlrev_b32 v{t[0]}, 8, v{vG}\nv_and_b32 v{t[1]}, 1, v{vG}\nv_lshl_add_u32 v{t[0]}, v{t[1]}, 6, v{t[0]}')
    a(f'v_and_b32 v{t[1]}, 15, v{vL}\nv_lshl_add_u32 v{vLw[0]}, v{t[1]}, 2, v{t[0]}')
    a(f'v_bfe_u32 v{t[1]}, v{vL}, 1, 1\nv_lshlrev_b32 v{t[1]}, 3, v{t[1]}\nv_bfe_u32 v{t[2]}, v{vL}, 2, 2\nv_lshl_add_u32 v{t[1]}, v{t[2]}, 1, v{t[1]}\nv_and_b32 v{t[2]}, 1, v{vL}\nv_add_u32 v{t[1]}, v{t[1]}, v{t[2]}')
    a(f'v_lshl_add_u32 v{vLw[4]}, v{t[1]}, 2, v{t[0]}\nv_xor_b32 v{vLw[1]}, 64, v{vLw[0]}\nv_xor_b32 v{vLw[5]}, 64, v{vLw[4]}')
    a(f'v_add_u32 v{vLw[0]}, s{sT[9]}, v{vLw[0]}\nv_add_u32 v{vLw[1]}, s{sT[9]}, v{vLw[1]}\nv_add_u32 v{vLw[2]}, {MS}, v{vLw[0]}\nv_add_u32 v{vLw[3]}, {MS}, v{vLw[1]}')
    a(f's_add_u32 s{sT[9]}, s{sT[9]}, {2*MS}\nv_add_u32 v{vLw[4]}, s{sT[9]}, v{vLw[4]}\nv_add_u32 v{vLw[5]}, s{sT[9]}, v{vLw[5]}')
    a(f'v_lshlrev_b32 v{t[0]}, 7, v{vI}\nv_and_b32 v{t[3]}, 2, v{vI}\nv_xor_b32 v{t[3]}, v{t[3]}, v{vG}\nv_lshl_add_u32 v{t[1]}, v{t[3]}, 5, v{t[0]}\nv_mul_u32_u24 v{t[2]}, {MS}, v{vHB}\nv_add_u32 v{vLr}, v{t[1]}, v{t[2]}')
    l1 = a.newlab(name+'_p')
    a(f's_cmp_eq_u32 s{sW}, 0\ns_cbranch_scc1 {l1}')
    a(f'v_mul_u32_u24 v{t[2]}, {WSTR}, v{vHB}\nv_add_u32 v{t[2]}, {2*MS}, v{t[2]}\nv_add_u32 v{vLr}, v{t[1]}, v{t[2]}')
    a(f's_cmp_eq_u32 s{sW}, 1\ns_cbranch_scc1 {l1}')
    a(f'v_lshrrev_b32 v{t[1]}, 1, v{t[3]}\nv_lshl_add_u32 v{t[0]}, v{t[1]}, 6, v{t[0]}\nv_and_b32 v{t[1]}, 1, v{vG}\nv_lshl_add_u32 v{t[0]}, v{t[1]}, 4, v{t[0]}\nv_add_u32 v{vLr}, v{t[0]}, v{t[2]}')
    a.lab(l1)
    a(f'v_add_u32 v{vPw}, {LDS_P}, v{vL16}\nv_xor_b32 v{t[0]}, 128, v{vPw}\nv_add_u32 v{t[1]}, 8, v{vPw}\nv_mov_b32 v{t[2]}, {LDS_Z}')
    a(f'v_cmp_eq_u32 vcc, 0, v{vHB}\ns_nop 1')
    a(f'v_cndmask_b32 v{vPr[0]}, v{t[2]}, v{vPw}, vcc\nv_cndmask_b32 v{vPr[1]}, v{t[2]}, v{t[0]}, vcc\nv_cndmask_b32 v{vPr[2]}, v{t[2]}, v{t[1]}, vcc')
    a(f'v_cndmask_b32 v{vPr[3]}, v{t[0]}, v{t[2]}, vcc\nv_cndmask_b32 v{vPr[4]}, v{vPw}, v{t[2]}, vcc\nv_cndmask_b32 v{vPr[5]}, v{t[1]}, v{t[2]}, vcc')
    a(f'v_mov_b32 v{t[0]}, 0xeeee\nv_mov_b32 v{t[1]}, 0x4444\nv_cndmask_b32 v{vIdx}, v{t[0]}, v{t[1]}, vcc')
    sHB = 54
    a(f's_mov_b64 s[{sHB}:{sHB+1}], vcc\nv_and_b32 v{t[2]}, 1, v{vL}\nv_cmp_eq_u32 vcc, 0, v{t[2]}\ns_nop 1\nv_cndmask_b32 v{vIdxM}, v{t[0]}, v{t[1]}, vcc')
    a(f'v_and_b32 v{t[0]}, 1, v{vI}\nv_lshlrev_b32 v{t[0]}, 4, v{t[0]}\nv_mov_b32 v{t[1]}, 0x3f80\nv_lshlrev_b32 v{t[1]}, v{t[0]}, v{t[1]}\nv_lshrrev_b32 v{t[0]}, 1, v{vI}')
    for u in range(4):
        a(f'v_cmp_eq_u32 vcc, {u}, v{t[0]}\nv_mov_b32 v{vOneT+u}, 0x3f803f80\nv_mov_b32 v{vSent+u}, -1\nv_cndmask_b32 v{vSel+u}, 0, v{t[1]}, vcc')
    a(f'v_cmp_gt_u32 vcc, 2, v{vG}\nv_mov_b32 v{vOneM+2}, 0\nv_mov_b32 v{vOneM+3}, 0\nv_cndmask_b32 v{vOneM}, 0, v{vOneT}, vcc\nv_cndmask_b32 v{vOneM+1}, 0, v{vOneT}, vcc')
    for r in (vBlo+6, vBlo+7, vBhi+6, vBhi+7): a(f'v_mov_b32 v{r}, 0')
    for b in range(4): a(f'v_mov_b32 v{vWm+4*b+2}, 0\nv_mov_b32 v{vWm+4*b+3}, 0')
    cl = struct.unpack('<I', struct.pack('<f', (128**-0.5)*math.log2(math.e)))[0]
    a(f's_mov_b32 s{sCl}, {cl:#x}\ns_mov_b32 s{sTO}, {1<<22}')
    a(f'v_lshlrev_b32 v{t[3]}, 11, v{vI}\nv_and_b32 v{t[0]}, 1, v{vG}\nv_lshl_add_u32 v{t[3]}, v{t[0]}, 3, v{t[3]}\nv_lshl_add_u32 v{t[3]}, v{vHB}, 2, v{t[3]}\ns_lshl_b32 s{sT[1]}, s{sJ}, 4\nv_add_u32 v{t[3]}, s{sT[1]}, v{t[3]}')
    mC = a.newlab(name+'_p')
    a(f'v_and_b32 v{t[4]}, 0x28, v{vL}')
    for i in range(NP):
        a(f's_waitcnt vmcnt({8*min(3, NP-1-i)})'); wread(i)
        if i+4 < NP: wdma(i+4)
    if verify: verify(a)
    l2 = a.newlab(name+'_p')
    a(f's_cmp_eq_u32 s{sW}, 2\ns_cbranch_scc0 {l2}')
    a(f'v_lshrrev_b32 v{t[0]}, 4, v{vL}\nv_lshlrev_b32 v{t[0]}, 10, v{t[0]}\nv_and_b32 v{t[1]}, 15, v{vL}\nv_lshl_add_u32 v{vAw}, v{t[1]}, 4, v{t[0]}')
    a(f's_lshl_b32 s{sT[1]}, s{sSlot}, 12\ns_lshl_b32 s{sT[2]}, s{sX}, 8\ns_add_u32 s{sT[1]}, s{sT[1]}, s{sT[2]}\nv_add_u32 v{vAw}, s{sT[1]}, v{vAw}')
    nearmap(vAw)
    a(f's_lshl_b32 s{sT[1]}, s{sSlot}, 9\ns_add_u32 s{sT[1]}, s{sT[1]}, s{sT[4]}\nv_add_u32 v{vAw2}, s{sT[1]}, v{vL16}\nv_cmp_gt_u32 vcc, 32, v{vL}\ns_nop 1\nv_cndmask_b32 v{vAw2}, v{t[5]}, v{vAw2}, vcc')
    a.lab(l2)
    assert not cmulti
    nearmap(vCrd); nearmap(vCwr)
    if c2: a(f'v_cmp_gt_u32 vcc, 32, v{vL}\ns_nop 1\nv_cndmask_b32 v{vCwr}, v{t[5]}, v{vCwr}, vcc')
    else: a(f'v_cmp_eq_u32 vcc, 0, v{t[4]}\ns_nop 1\nv_cndmask_b32 v{vCwr}, v{t[5]}, v{vCwr}, vcc')
    a(f's_load_dwordx2 s[{SRD_IN}:{SRD_IN+1}], s[0:1], 8\ns_mov_b32 s{SRD_IN+2}, 16384\ns_waitcnt lgkmcnt(0)\nbuffer_load_dword v{vOut}, v{t[3]}, {IND}, 0 offen')
    a('s_barrier')
    if light: a('s_memrealtime s[82:83]')
    a(f'v_mov_b32 v{t[0]}, 0\nv_mov_b32 v{t[1]}, {LDS_Z}\nds_write_b32 v{t[1]}, v{t[0]}\nds_write_b32 v{t[1]}, v{t[0]} offset:4')
    a(f's_mov_b32 s{sD[0]}, 0\ns_mov_b32 s{sD[1]}, 16384\ns_mov_b32 s{sD[2]}, 32768')
    a(f's_mov_b32 s{sA[0]}, 0\ns_mov_b32 s{sA[1]}, {32*8192}\ns_mov_b32 s{sA[2]}, {64*8192}')
    a(f's_mov_b32 s{sB[0]}, 0\ns_mov_b32 s{sB[1]}, 131072\ns_mov_b32 s{sB[2]}, 262144')
    if cmulti:
        a(f's_mov_b32 s{sCr[0]}, 0\ns_mov_b32 s{sCr[1]}, {MBY}\ns_lshl_b32 s{sT[0]}, s{sPar}, 14\ns_sub_u32 s{sCr[2]}, {2*MBY+8192}, s{sT[0]}')
    elif c2: a(f's_mov_b32 s{sCr[0]}, 0\ns_mov_b32 s{sCr[1]}, 524288\ns_mov_b32 s{sCr[2]}, 1048576')
    else: a(f's_mov_b32 s{sCr[0]}, 0\ns_mov_b32 s{sCr[1]}, 262144\ns_mov_b32 s{sCr[2]}, 524288')
    a(f's_mov_b32 s{sStep}, 0\ns_mov_b32 s{sKM}, 0')
    a(f's_waitcnt vmcnt(0)\nbuffer_store_dword v{vOut}, v{vDwr}, {WSD}, 0 offen{LS}')

    sVt = sXn
    def dma_tok(part, sTok=sTok):
        L = []
        for cc in range(4):
            L.append(f's_add_u32 m0, s{sTok}, {(part*4+cc)*1024}\ns_add_u32 s{sT[0]}, s{sVt}, {cc*M*64 + part*1024}\nbuffer_load_dwordx4 v{vVt}, {WSD}, s{sT[0]} offen{ksc} lds')
        L.append(f's_add_u32 m0, s{sTok}, {(8+part)*1024}\ns_add_u32 s{sT[0]}, s{sVt}, {part*1024}\nbuffer_load_dwordx4 v{vKt}, {WSD}, s{sT[0]} offen{ksc} lds')
        return L
    def read_tok():
        a(f'v_add_u32 v{t[3]}, s{sTok}, v{vL16}')
        for f in range(8): a(f'ds_read_b128 {vr(vVtf+f*4,4)}, v{t[3]} offset:{f*1024}')
        for f in range(2): a(f'ds_read_b128 {vr(vKtf+f*4,4)}, v{t[3]} offset:{(8+f)*1024}')
    def vwtok_list():
        L = []
        for b in range(4):
            for tb in range(2):
                for cc in range(4):
                    D = vr(accT+(b*2+tb)*4,4)
                    L.append(f'v_mfma_f32_16x16x32_bf16 {D}, {vr(vVtf+(tb*4+cc)*4,4)}, {ar(aO(cc>>1,b)+(cc&1)*4,4)}, {D if cc else 0}')
            if b: L[-1] += '\n' + vwcvt(b-1)
        return L
    vwcvt = lambda b: '\n'.join(f'v_cvt_pk_bf16_f32 v{vWt+b*4+tb*2+k}, v{accT+(b*2+tb)*4+2*k}, v{accT+(b*2+tb)*4+2*k+1}' for tb in range(2) for k in range(2))
    zl = [f'v_mov_b32 v{acc+r}, 0' for r in range(24)] + [f'v_mov_b32 v{accW+r}, 0' for r in range(16)]
    sFl = sPf; sPr = sXb
    a(f's_lshl_b32 s{sPr}, s{sH}, 7\ns_lshl_b32 s{sT[0]}, s{sC}, 2\ns_add_u32 s{sPr}, s{sPr}, s{sT[0]}\ns_add_u32 s{sPr}, s{sPr}, {TAB_PR}')
    if kvflags:
        a(f's_lshl_b32 s{sFl}, s{sH}, 3\ns_add_u32 s{sFl}, s{sFl}, {TAB_KV}\nv_mov_b32 v{t[1]}, 0')
        lf, lg = a.newlab(name+'_p'), a.newlab(name+'_p')
        a.lab(lf)
        a(f'buffer_load_dwordx2 {vr(vFl,2)}, v{t[1]}, {WSD}, s{sFl} offen sc1\ns_waitcnt vmcnt(0)')
        a(f'v_max_u32 v{t[0]}, v{vFl}, v{vFl+1}\nv_cmp_eq_u32 vcc, -1, v{t[0]}\ns_cbranch_vccz {lg}')
        fail_check(); a(f's_sleep 2\ns_branch {lf}')
        a.lab(lg)
    lq = a.newlab(name+'_p')
    a(f's_lshl_b32 s{sVt}, s{sW}, 11\ns_mul_i32 s{sTok}, s{sW}, 10240\ns_add_u32 s{sTok}, s{sTok}, {LDS_TOK}\ns_cmp_gt_u32 s{sW}, 1\ns_cbranch_scc1 {lq}')
    for x in dma_tok(0) + dma_tok(1): a(x)
    a.lab(lq)
    a(f's_mov_b32 s{sTok}, {LDS_TOK}\ns_waitcnt vmcnt(0) lgkmcnt(0)\ns_barrier')
    read_tok(); a('s_waitcnt lgkmcnt(0)')
    for x in vwtok_list(): a(x)
    a('s_nop 7'); a(vwcvt(3))
    a(f's_mov_b32 s{sVt}, 4096\ns_mov_b32 s{sTok}, {LDS_TOK+10240}')
    for x in zl: a(x)

    LOOP = name+'_loop'
    if light: a('s_memrealtime s[84:85]\ns_memtime s[88:89]')
    a('.p2align 6'); a.lab(LOOP)
    stamp(0)
    if stamps: a('s_mov_b32 s72, 0\ns_mov_b32 s73, 0\ns_mov_b32 s74, 0\ns_mov_b32 s75, 0')
    dload = lambda k: f'buffer_load_dwordx4 {vr(vMem+4*k,4)}, v{vDrd}, {WSD}, s{sD[0]} offen offset:{k*1024} sc1'
    for _ in range(dgap): a('s_nop 15')
    for k in range(4): a(dload(k))
    def sm(blk, ks):
        return f'v_smfmac_f32_16x16x64_bf16 {vr(acc+4*blk,4)}, {vr(vMem+4*ks,4)}, {ar(aW(blk>>1,ks,blk&1),8)}, v{vIdxM}'
    XD = []
    a.lab(f'{name}_dp0'); a('s_waitcnt vmcnt(3)')
    for x in chk4(vMem, t[0]): a(x)
    a(f's_cbranch_vccnz {name}_dr0')
    if not ackt: stamp(7, 3)
    nx = 0
    for k in range(4):
        a.lab(f'{name}_dm{k}')
        a(sm(0,k)); a(sm(1,k))
        if k < 3:
            c = chk4(vMem+4*(k+1), t[0])
            a(f's_waitcnt vmcnt({2-k})'); a(c[0]); a(sm(2,k)); a(c[1]); a(c[2]); a(sm(3,k)); a(f's_cbranch_vccnz {name}_dr{k+1}')
        else:
            stamp(1); stamp(1, 3); a(XD[0] if XD else ''); a(sm(2,k)); a(sm(3,k))
    vs = [sm(4+eb, ks) for ks in range(4) for eb in range(2)]
    ha = lambda b: f'v_add_f32 v{acc+4*b}, v{acc+4*b}, v{acc+4*b+1}\nv_add_f32 v{acc+4*b+2}, v{acc+4*b+2}, v{acc+4*b+3}'
    w5 = lambda b: f'ds_write2_b32 v{vLw[b]}, v{acc+4*b}, v{acc+4*b+2} offset0:0 offset1:{RS//4}'
    for x in [vs[0], vs[1], vs[2], vs[3], 's_nop 0', ha(0), vs[4], w5(0), ha(1), vs[5], w5(1), ha(2), vs[6], w5(2), ha(3), vs[7], w5(3), 's_nop 4', ha(4), w5(4), ha(5), w5(5)]: a(x)
    stamp(1, 2)
    a('s_waitcnt lgkmcnt(0)\ns_barrier')
    stamp(2); stamp(2, 2); stamp(1, 1)
    def rearm(pos, wv=None):
        A = f'buffer_store_dwordx4 {vr(vSent,4)}, v{vAw}, {WSD}, s{sA[2]} offen{LS}\nbuffer_store_dwordx4 {vr(vSent,4)}, v{vAw2}, {WSD}, s{sA[2]} offen{LS}' if ra == pos else ''
        O = ''
        if rc == pos:
            O += f'buffer_store_dwordx4 {vr(vSent,4)}, v{vAw}, {WSD}, s{sCr[1]} offen sc1\n'
            if c2: O += f's_add_u32 s{sT[0]}, s{sCr[1]}, 262144\nbuffer_store_dwordx4 {vr(vSent,4)}, v{vAw}, {WSD}, s{sT[0]} offen sc1\n'
        if rb == pos:
            O += f'buffer_store_dwordx4 {vr(vSent,4)}, v{vAw2}, {WSD}, s{sD[2]} offen{LS}\nv_subrev_u32 v{t[0]}, 16384, v{vBwr}\n'
            for k in range(4): O += f's_add_u32 s{sT[0]}, s{sB[2]}, {k*8192}\nbuffer_store_dwordx4 {vr(vSent,4)}, v{t[0]}, {WSD}, s{sT[0]} offen{LS}\n'
        if wv == 0: a(A); return
        if wv == 2: a(O); return
        if A:
            l = a.newlab(name+'_n'); a(f's_cmp_gt_u32 s{sW}, 1\ns_cbranch_scc1 {l}'); a(A); a.lab(l)
        if O:
            l = a.newlab(name+'_n'); a(f's_cmp_eq_u32 s{sW}, 2\ns_cbranch_scc0 {l}'); a(O); a.lab(l)
    W1, W2, W3, F3L = name+'_w1', name+'_w2', name+'_w3', name+'_f3'
    a(f's_cmp_eq_u32 s{sW}, 0\ns_cbranch_scc0 {W1}')
    for wv in range(4):
        for k in range(2): a(f'ds_read_b128 {vr(vX+(wv*2+k)*4,4)}, v{vLr} offset:{wv*WSTR+k*16}')
    a('s_waitcnt lgkmcnt(4)')
    for r in range(0, 8, 2): a(pk(vX+r, vX+r, vX+8+r))
    a('s_waitcnt lgkmcnt(0)')
    for r in range(0, 8, 2): a(pk(vX+16+r, vX+16+r, vX+24+r))
    for r in range(0, 8, 2): a(pk(vX+r, vX+r, vX+16+r))
    for r in range(4): a(f'v_cvt_pk_bf16_f32 v{vXo+r}, v{vX+2*r}, v{vX+2*r+1}')
    a('s_nop 1')
    mf(vS+4, vKtf+4, vXo, 0); mf(vS, vKtf, vXo, 0); mf(vS+8, vXo, vXo, 0)
    a('s_nop 6')
    for r in range(4): a(f'v_mov_b32_dpp v{vS+r}, v{vS+4+r} row_ror:8 row_mask:0xf bank_mask:0xc')
    a(f'buffer_store_dwordx4 {vr(vS,4)}, v{vAw}, {WSD}, s{sA[0]} offen{LS}\nbuffer_store_dwordx4 {vr(vS+8,4)}, v{vAw2}, {WSD}, s{sA[0]} offen{LS}')
    stamp(2, 1); stamp(2, 3)
    rearm('pub', 0); a(f's_branch {F3L}')
    a.lab(W1)
    a(vpart); a('s_waitcnt lgkmcnt(0)\ns_barrier')
    a(f's_cmp_eq_u32 s{sW}, 3\ns_cbranch_scc1 {F3L}\ns_cmp_eq_u32 s{sW}, 2\ns_cbranch_scc1 {W2}')
    for wv in range(2):
        for k in range(2): a(f'ds_read_b128 {vr(vX+(wv*2+k)*4,4)}, v{vLr} offset:{wv*2*WSTR+k*16}')
    def vsum():
        a('s_waitcnt lgkmcnt(0)')
        for r in range(0, 8, 2): a(pk(vX+r, vX+r, vX+8+r))
        for r in range(8): a(f'v_add_f32_dpp v{vX+8+r}, v{vX+r}, v{vX+r} {DPP8}')
        for r in range(4): a(f'v_cvt_pk_bf16_f32 v{vXo+r}, v{vX+8+2*r}, v{vX+9+2*r}')
    vsum()
    a(f'buffer_store_dwordx4 {vr(vXo,4)}, v{vAw}, {WSD}, s{sA[0]} offen{LS}')
    stamp(2, 1); stamp(2, 3)
    rearm('pub', 0); a(f's_branch {F3L}')
    a.lab(W2)
    rearm('b1', 2)
    for wv in range(2):
        for k in range(4): a(f'ds_read_b64 {vr(vX+wv*8+2*k,2)}, v{vLr} offset:{wv*2*WSTR+(k&1)*32+(k>>1)*8}')
    vsum()
    a.lab(F3L)
    LAST = name+'_last'
    a(f's_cmp_eq_u32 s{sStep}, {nsteps}\ns_cbranch_scc1 {LAST}')
    a(f's_add_u32 s{sA2}, s{sA[0]}, 4096')
    vld = lambda R: f'buffer_load_dwordx4 {vr(R,4)}, v{vAvr}, {WSD}, s{sA[0]} offen sc1\nbuffer_load_dwordx4 {vr(R+4,4)}, v{vAvr}, {WSD}, s{sA2} offen sc1'
    sld = lambda R: (f'buffer_load_dwordx4 {vr(R,4)}, v{vAsr}, {WSD}, s{sA[0]} offen sc1\nbuffer_load_dwordx4 {vr(R+4,4)}, v{vAsr}, {WSD}, s{sA[0]} offen offset:2048 sc1\n'
              f'buffer_load_dwordx4 {vr(R+8,4)}, v{vAsr}, {WSD}, s{sA2} offen sc1\nbuffer_load_dwordx4 {vr(R+12,4)}, v{vAsr}, {WSD}, s{sA2} offen offset:2048 sc1\n'
              f'buffer_load_dwordx4 {vr(R+16,4)}, v{vAmr}, {WSD}, s{sA[0]} offen sc1\nbuffer_load_dwordx4 {vr(R+20,4)}, v{vAmr}, {WSD}, s{sA2} offen sc1')
    vwm = [f'v_smfmac_f32_16x16x64_bf16 {vr(accW+4*b,4)}, {vr(vVm+4*n2,4)}, {ar(aO(n2,b),8)}, v{vIdx}' for n2 in range(2) for b in range(4)]
    vwc = [f'v_cvt_pk_bf16_f32 v{vWm+4*b+k}, v{accW+4*b+2*k}, v{accW+4*b+2*k+1}' for b in range(4) for k in range(2)]
    B2 = name+'_b2'; FIN = name+'_fin'
    a(f's_cmp_eq_u32 s{sW}, 3\ns_cbranch_scc1 {W3}')
    assert amode == 0
    a(f's_barrier\nds_read_b128 {vr(vVm,4)}, v{vPw} offset:{LDS_V-LDS_P}\nds_read_b128 {vr(vVm+4,4)}, v{vPw} offset:{LDS_V-LDS_P+1024}')
    if kvflags:
        a.lab(name+'_kf')
        a(f'v_max_u32 v{t[0]}, v{vFl}, v{vFl+1}\nv_cmp_eq_u32 vcc, -1, v{t[0]}\ns_cbranch_vccnz {name}_kfr')
    a(f's_sub_u32 s{sT[3]}, {2*LDS_TOK+10240}, s{sTok}')
    TD = dma_tok(0, sT[3]) + dma_tok(1, sT[3])
    le = a.newlab(name+'_n')
    for wv, idx in enumerate(((0,1,2), (3,4,5), (6,7,8,9))):
        lt = a.newlab(name+'_n')
        if wv < 2: a(f's_cmp_eq_u32 s{sW}, {wv}\ns_cbranch_scc0 {lt}')
        for k in idx: a(TD[k])
        if wv < 2: a(f's_branch {le}'); a.lab(lt)
    a.lab(le)
    a('s_waitcnt lgkmcnt(0)')
    for x in vwm: a(x)
    rearm('bv')
    preads = (f'ds_read_b64 {vr(vBlo,2)}, v{vPr[0]}\nds_read_b64 {vr(vBlo+2,2)}, v{vPr[1]}\nds_read_b64 {vr(vBlo+4,2)}, v{vPr[2]}\n'
              f'ds_read_b64 {vr(vBhi,2)}, v{vPr[3]}\nds_read_b64 {vr(vBhi+2,2)}, v{vPr[4]}\nds_read_b64 {vr(vBhi+4,2)}, v{vPr[5]}')
    a('s_waitcnt lgkmcnt(0)'); stamp(6, 1); a('s_barrier'); stamp(5); stamp(7, 1)
    a(preads)
    for x in vwc: a(x)
    a('s_waitcnt lgkmcnt(3)')
    mf(vLs, vOneT, vBlo, 0); mf(vLs, vOneM, vBlo+4, 1)
    mf(vF, vWt, vBlo, 0); mf(vF+4, vWt+4, vBlo, 0); mf(vF, vWm, vBlo+4, 1); mf(vF+4, vWm+4, vBlo+4, 1)
    a('s_waitcnt lgkmcnt(0)')
    mf(vF, vWt+8, vBhi, 1); mf(vF+4, vWt+12, vBhi, 1)
    a(f's_branch {FIN}')
    a.lab(W3)
    def schk(R, Rv):
        for k in range(4): a(f'v_max3_u32 v{t[k]}, v{R+6*k}, v{R+6*k+1}, v{R+6*k+2}')
        for k in range(4): a(f'v_max3_u32 v{t[k]}, v{t[k]}, v{R+6*k+3}, v{R+6*k+4}')
        a(f'v_max3_u32 v{t[0]}, v{t[0]}, v{R+5}, v{R+11}\nv_max3_u32 v{t[1]}, v{t[1]}, v{R+17}, v{R+23}')
        if Rv is not None:
            a(f'v_max3_u32 v{t[2]}, v{t[2]}, v{Rv}, v{Rv+1}\nv_max3_u32 v{t[3]}, v{t[3]}, v{Rv+2}, v{Rv+3}\nv_max3_u32 v{t[0]}, v{t[0]}, v{Rv+4}, v{Rv+5}\nv_max3_u32 v{t[1]}, v{t[1]}, v{Rv+6}, v{Rv+7}')
        a(f'v_max3_u32 v{t[0]}, v{t[0]}, v{t[2]}, v{t[3]}\nv_max_u32 v{t[0]}, v{t[0]}, v{t[1]}\nv_cmp_eq_u32 vcc, -1, v{t[0]}')
    def smx_head(R):
        a(pk(R+16, R+16, R+20)); a(pk(R+18, R+18, R+22))
        for r in (0, 2): a(pk(R+r, R+r, R+4+r)); a(pk(R+8+r, R+8+r, R+12+r))
        for r in range(4): a(f'v_add_f32_dpp v{R+4+r}, v{R+16+r}, v{R+16+r} {DPP8}')
        for r in (0, 2): a(pk(R+r, R+r, R+8+r))
    def smx_tail(R):
        a(f'v_max3_f32 v{t[0]}, v{R+4}, v{R+5}, v{R+6}\nv_max3_f32 v{t[0]}, v{t[0]}, v{R+7}, v{R}\nv_max3_f32 v{t[0]}, v{t[0]}, v{R+1}, v{R+2}\nv_max_f32 v{t[0]}, v{t[0]}, v{R+3}')
        a(f's_nop 1\nv_max_f32_dpp v{t[0]}, v{t[0]}, v{t[0]} {DPP8}')
        a(f'v_mov_b32 v{t[1]}, v{t[0]}\ns_nop 1\nv_permlane16_swap_b32 v{t[0]}, v{t[1]}\nv_max_f32 v{t[0]}, v{t[0]}, v{t[1]}')
        a(f'v_mov_b32 v{t[1]}, v{t[0]}\ns_nop 1\nv_permlane32_swap_b32 v{t[0]}, v{t[1]}\nv_max_f32 v{t[0]}, v{t[0]}, v{t[1]}')
        a(f'v_mul_f32 v{t[0]}, s{sCl}, v{t[0]}')
        for r in range(8): a(f'v_fma_f32 v{R+r}, v{R+r}, s{sCl}, -v{t[0]}')
        for r in range(8): a(f'v_exp_f32 v{R+r}, v{R+r}')
        a('s_nop 0')
        for r in range(4): a(f'v_cvt_pk_bf16_f32 v{vXo+r}, v{R+2*r}, v{R+2*r+1}')
        a(f'ds_write_b128 v{vPw}, {vr(vXo,4)}')
    sets = [(vX, vX+24), (vVtf, vVtf+24)][:ns]
    for _ in range(s0): a('s_nop 15')
    for k, (R, Rv) in enumerate(sets):
        if k:
            for _ in range(sgap): a('s_nop 15')
        a(sld(R)); a(vld(Rv))
    a.lab(name+'_sp')
    for k, (R, Rv) in enumerate(sets):
        a(f's_waitcnt vmcnt({8*(ns-1)})'); schk(R, Rv)
        a(f's_cbranch_vccz {name}_sg{k}')
        a(sld(R)); a(vld(Rv)); fail_check(1)
    a(f's_branch {name}_sp')
    for k, (R, Rv) in enumerate(sets):
        a.lab(f'{name}_sg{k}')
        stamp(4); stamp(5, 1); stamp(2, 3)
        if amode == 0:
            a(f'ds_write_b128 v{vPw}, {vr(Rv,4)} offset:{LDS_V-LDS_P}\nds_write_b128 v{vPw}, {vr(Rv+4,4)} offset:{LDS_V-LDS_P+1024}')
        smx_head(R)
        for r in range(8): a(f'v_mov_b32 v{vVm+r}, v{Rv+r}') if False else None
        if amode == 0: a('s_waitcnt lgkmcnt(0)\ns_barrier')
        vwm3 = [f'v_smfmac_f32_16x16x64_bf16 {vr(accW+4*b,4)}, {vr(Rv+4*n2,4)}, {ar(aO(n2,b),8)}, v{vIdx}' for n2 in range(2) for b in range(4)]
        smx_tail(R)
        for x in vwm3[:3]: a(x)
        a('s_waitcnt lgkmcnt(0)'); stamp(6, 1); a('s_barrier'); stamp(5); stamp(7, 1)
        a(preads)
        for x in vwm3[3:]: a(x)
        if k < ns-1: a(f's_branch {name}_sj')
    a.lab(name+'_sj')
    a('s_waitcnt lgkmcnt(3)')
    mf(vLs, vOneT, vBlo, 0); mf(vLs, vOneM, vBlo+4, 1); mf(vF, vWt, vBlo, 0); mf(vF+4, vWt+4, vBlo, 0)
    a('s_waitcnt vmcnt(0) lgkmcnt(0)')
    mf(vF, vWt+8, vBhi, 1); a(vwc[0]); a(vwc[1]); mf(vF+4, vWt+12, vBhi, 1); a(vwc[2]); a(vwc[3]); a(vwc[4]); a(vwc[5])
    mf(vF, vWm, vBlo+4, 1); a(vwc[6]); a(vwc[7]); mf(vF+4, vWm+4, vBlo+4, 1)
    a.lab(FIN)
    a(f's_nop 0\nv_rcp_f32 v{t[0]}, v{vLs}')
    mf(vF, vWm+8, vBhi+4, 1); mf(vF+4, vWm+12, vBhi+4, 1)
    a(f's_nop 0\nv_mov_b32_dpp v{t[0]}, v{t[0]} row_ror:8 row_mask:0xf bank_mask:0xc\ns_nop 4')
    for r in range(0, 8, 2):
        a(f'v_mul_f32 v{vF+r}, v{vF+r}, v{t[0]}\nv_mul_f32 v{vF+r+1}, v{vF+r+1}, v{t[0]}\nv_cvt_pk_bf16_f32 v{vOut+r//2}, v{vF+r}, v{vF+r+1}')
    a(f'buffer_store_dwordx4 {vr(vOut,4)}, v{vBwr}, {WSD}, s{sB[0]} offen{LS}')
    stamp(6); stamp(3, 2); stamp(3, 3)
    bld = lambda k: f'buffer_load_dwordx4 {vr(vRd+4*k,4)}, v{vBrd}, {WSD}, s{sB[0]} offen sc1'
    read_tok()
    for k in range(nb):
        if zpos == 0 and k:
            for x in zl[(k-1)*40//(nb-1):k*40//(nb-1)]: a(x)
        else:
            for _ in range(b0 if k == 0 else bgap): a('s_nop 15')
        a(bld(k))
    a.lab(name+'_hb')
    for k in range(nb):
        a(f's_waitcnt vmcnt({nb-1})')
        mf(vRa, vSel, vRd+4*k, 0)
        for x in chk4(vRd+4*k, t[0]): a(x)
        a(f's_cbranch_vccz {name}_hbd')
        a(bld(k)); fail_check(2)
    a(f's_branch {name}_hb')
    a.lab(name+'_hbd')
    a('s_nop 3')
    for r in range(4): a(f'v_add_f32_dpp v{vOut+r}, v{vRa+r}, v{vRa+r} {DPP8}')
    a(f'buffer_store_dwordx4 {vr(vOut,4)}, v{vCwr}, {WSD}, s{sCr[0]} offen sc1')
    stamp(3); stamp(4, 2); stamp(4, 3)
    if ackt: a('s_waitcnt vmcnt(0)'); stamp(7, 3)
    a(f's_waitcnt lgkmcnt(0)\ns_sub_u32 s{sTok}, {2*LDS_TOK+10240}, s{sTok}')
    flload = (f's_add_u32 s{sT[0]}, s{sStep}, 3\ns_and_b32 s{sT[1]}, s{sT[0]}, 0x34\ns_lshr_b32 s{sT[0]}, s{sT[0]}, 3\ns_cmp_eq_u32 s{sT[1]}, 4\ns_cselect_b32 s{sT[1]}, 8, 0\n'
              f's_add_u32 s{sT[0]}, s{sT[0]}, s{sT[1]}\ns_lshl_b32 s{sT[0]}, s{sT[0]}, 8\ns_add_u32 s{sT[0]}, s{sT[0]}, s{sFl}\nv_mov_b32 v{t[1]}, 0\nbuffer_load_dwordx2 {vr(vFl,2)}, v{t[1]}, {WSD}, s{sT[0]} offen sc1')
    def aux():
        if tokbv:
            if 'k' not in abl: a(f'buffer_store_dwordx4 {vr(vXo,4)}, v{vKMw}, {WSD}, s{sKM} offen{ksc}')
            if progress:
                lpr = a.newlab(name+'_n')
                a(f's_cmp_eq_u32 s{sW}, 1\ns_cbranch_scc0 {lpr}\nv_mov_b32 v{t[0]}, s{sStep}\nv_mov_b32 v{t[1]}, 0\nbuffer_store_dword v{t[0]}, v{t[1]}, {WSD}, s{sPr} offen sc1')
                a.lab(lpr)
            return
        a(f's_lshl_b32 s{sT[1]}, s{sW}, 10\ns_add_u32 s{sT[2]}, s{sT[1]}, s{sTok}\ns_mov_b32 m0, s{sT[2]}\ns_lshl_b32 s{sT[0]}, s{sW}, 17\ns_add_u32 s{sT[0]}, s{sT[0]}, s{sVt}')
        a(f'buffer_load_dwordx4 v{vVt}, {WSD}, s{sT[0]} offen{ksc} lds\ns_add_u32 m0, s{sT[2]}, 3072\ns_add_u32 s{sT[1]}, s{sT[1]}, s{sVt}')
        a(f'buffer_load_dwordx4 v{vVt}, {WSD}, s{sT[0]} offen offset:1024{ksc} lds\ns_add_u32 m0, s{sT[2]}, 8192\ns_cmp_gt_u32 s{sW}, 1\ns_cselect_b32 s{sT[1]}, {OOB}, s{sT[1]}')
        a(f's_cselect_b32 m0, {LDS_V+2048}, m0\ns_nop 0\nbuffer_load_dwordx4 v{vKt}, {WSD}, s{sT[1]} offen{ksc} lds')
        a(f'buffer_store_dwordx4 {vr(vXo,4)}, v{vKMw}, {WSD}, s{sKM} offen{ksc}')
    cloads = f'buffer_load_dwordx4 {vr(vRd,4)}, v{vCrd}, {WSD}, s{sCr[0]} offen sc1\nbuffer_load_dwordx4 {vr(vRd+4,4)}, v{vCrd}, {WSD}, s{sCr[0]} offen offset:512 sc1'
    VL = vwtok_list()
    cl2 = f's_add_u32 s{sT[5]}, s{sCr[0]}, 262144\nbuffer_load_dwordx4 {vr(vRd+8,4)}, v{vCrd}, {WSD}, s{sT[5]} offen sc1\nbuffer_load_dwordx4 {vr(vRd+12,4)}, v{vCrd}, {WSD}, s{sT[5]} offen offset:512 sc1'
    if not late: rearm('cw'); aux()
    for k, x in enumerate(VL):
        if c2 and k == cpos0: a(cl2)
        if k == cpos: a(cloads)
        a(x)
    if cpos >= len(VL): a(cloads)
    nafter = 0
    if kvflags: a(flload); nafter = 1
    a(f's_add_u32 s{sVt}, s{sVt}, 2048')
    for s_ in (sA, sB):
        a(f's_mov_b32 s{sT[0]}, s{s_[0]}\ns_mov_b32 s{s_[0]}, s{s_[1]}\ns_mov_b32 s{s_[1]}, s{s_[2]}\ns_mov_b32 s{s_[2]}, s{sT[0]}')
    a(f's_mov_b32 s{sT[0]}, s{sD[0]}\ns_mov_b32 s{sD[0]}, s{sD[1]}\ns_mov_b32 s{sD[1]}, s{sD[2]}\ns_mov_b32 s{sD[2]}, s{sT[0]}')
    a(f's_add_u32 s{sStep}, s{sStep}, 1\ns_add_u32 s{sKM}, s{sKM}, 512')
    a(vwcvt(3))
    stamp(5, 2)
    if c2:
        a('s_waitcnt vmcnt(2)')
        a(chk8(vRd+8)); a(pk(vRa, vRd+8, vRd+12)); a(pk(vRa+2, vRd+10, vRd+14))
        a(f's_cbranch_vccz {name}_hd')
    a(f's_waitcnt vmcnt({nafter})')
    a.lab(name+'_hc')
    a(chk8(vRd)); a(pk(vRa, vRd, vRd+4)); a(pk(vRa+2, vRd+2, vRd+6))
    a(f's_cbranch_vccnz {name}_hcr')
    a.lab(name+'_hd')
    stamp(7); stamp(6, 2); stamp(5, 3)
    for r in range(4): a(f'v_add_f32_dpp v{vS+r}, v{vRa+r}, v{vRa+r} {DPP8}')
    a(f'v_cvt_pk_bf16_f32 v{vOut}, v{vS}, v{vS+1}\nv_cvt_pk_bf16_f32 v{vOut+1}, v{vS+2}, v{vS+3}\nv_cndmask_b32 v{vOut}, v{vOut+1}, v{vOut}, s[{sHB}:{sHB+1}]')
    a(f'buffer_store_dword v{vOut}, v{vDwr}, {WSD}, s{sD[0]} offen{LS}')
    stamp(6, 3)
    if late: rearm('cw'); aux()
    if zpos == 1:
        for x in zl: a(x)
    a(f's_mov_b32 s{sT[0]}, s{sCr[0]}\ns_mov_b32 s{sCr[0]}, s{sCr[1]}\ns_mov_b32 s{sCr[1]}, s{sCr[2]}\ns_mov_b32 s{sCr[2]}, s{sT[0]}')
    if stamps:
        a('s_waitcnt lgkmcnt(0)')
        for k in range(8): a(f'v_writelane_b32 v{t[2]}, s{sStamp+2*k}, {k}')
        a(f's_memrealtime s[76:77]\ns_waitcnt lgkmcnt(0)')
        for k in range(5): a(f'v_writelane_b32 v{t[2]}, s{72+k}, {8+k}')
        a(f's_lshl_b32 s{sT[0]}, s{sX}, 5\ns_add_u32 s{sT[0]}, s{sT[0]}, s{sSlot}\ns_lshl_b32 s{sT[0]}, s{sT[0]}, 2\ns_add_u32 s{sT[0]}, s{sT[0]}, s{sW}\ns_lshl_b32 s{sT[0]}, s{sT[0]}, 6\ns_add_u32 s{sT[0]}, s{sT[0]}, s{sStep}\ns_sub_u32 s{sT[0]}, s{sT[0]}, 1\ns_lshl_b32 s{sT[0]}, s{sT[0]}, 6\ns_add_u32 s{sT[0]}, s{sT[0]}, {OFF_STAMP}')
        a(f'v_lshlrev_b32 v{t[3]}, 2, v{vL}\nv_mov_b32 v{t[4]}, {OOB}\nv_cmp_gt_u32 vcc, 16, v{vL}\ns_nop 1\nv_cndmask_b32 v{t[3]}, v{t[4]}, v{t[3]}, vcc')
        a(f'buffer_store_dword v{t[2]}, v{t[3]}, {WSD}, s{sT[0]} offen')
    a(f's_branch {LOOP}')
    for k in range(4):
        a.lab(f'{name}_dr{k}'); fail_check(0)
        for kk in range(k, 4): a(dload(kk))
        if k == 0: a(f's_branch {name}_dp0')
        else:
            a(f's_waitcnt vmcnt({3-k})')
            for x in chk4(vMem+4*k, t[0]): a(x)
            a(f's_cbranch_vccnz {name}_dr{k}\ns_branch {name}_dm{k}')
    a.lab(name+'_hcr'); fail_check(3); a(cloads); a(f's_waitcnt vmcnt(0)\ns_branch {name}_hc')
    if amode: a.lab(name+'_vr'); fail_check(1); a(vld(vVm)); a(f's_branch {name}_vp')
    if kvflags:
        a.lab(name+'_kfr'); fail_check(1)
        a(flload.replace(f's{sStep}, 3', f's{sStep}, 2')); a(f's_waitcnt vmcnt(0)\ns_branch {name}_kf')
    a.lab(LAST)
    a(f'buffer_store_dwordx4 {vr(vXo,4)}, v{vKMw}, {WSD}, s{sKM} offen{ksc}')
    if progress: a(f's_waitcnt vmcnt(0)\ns_barrier\nv_mov_b32 v{t[0]}, 64\nv_mov_b32 v{t[1]}, 0\nbuffer_store_dword v{t[0]}, v{t[1]}, {WSD}, s{sPr} offen sc1')
    if light:
        a('s_memrealtime s[86:87]\ns_memtime s[90:91]\ns_waitcnt lgkmcnt(0)\ns_sub_u32 s90, s90, s88')
        for k, r in enumerate((80,82,84,86,90)): a(f'v_writelane_b32 v{t[2]}, s{r}, {k}')
        a(f's_lshl_b32 s{sT[0]}, s{sX}, 5\ns_add_u32 s{sT[0]}, s{sT[0]}, s{sSlot}\ns_lshl_b32 s{sT[0]}, s{sT[0]}, 2\ns_add_u32 s{sT[0]}, s{sT[0]}, s{sW}\ns_lshl_b32 s{sT[0]}, s{sT[0]}, 6\ns_add_u32 s{sT[0]}, s{sT[0]}, {OFF_STAMP}')
        a(f'v_lshlrev_b32 v{t[3]}, 2, v{vL}\nv_mov_b32 v{t[4]}, {OOB}\nv_cmp_gt_u32 vcc, 16, v{vL}\ns_nop 1\nv_cndmask_b32 v{t[3]}, v{t[4]}, v{t[3]}, vcc')
        a(f'buffer_store_dword v{t[2]}, v{t[3]}, {WSD}, s{sT[0]} offen')
    a(f's_branch {END}')
```

```python
from asmlib import *
from layout import *

class Gemm:
    SRD_WS, SRD_W, SRD_O, SRD_XD = 8, 12, 16, 92
    sXs, sWs, sCnt, sWstep = 20, 21, 22, 23
    sM0x, sM0w, sWv, sWn_, sWm_ = 26, 27, 28, 32, 33
    sXo, sWn, sLdb, sNK = 36, 37, 38, 39
    sT = [40, 41, 42, 43, 44, 45]
    def __init__(self, a, name, NB=4, MB=4, S=4):
        self.a, self.name, self.NB, self.MB, self.S = a, name, NB, MB, S
        self.TN, self.TM = NB*64, MB*64
        self.XS = self.TM*64; self.WSZ = 32*self.TN*2; self.SLOT = self.XS + self.WSZ
        self.nxd = self.XS//4096; self.nwd = self.WSZ//4096; self.nd = self.nxd + self.nwd
        self.rowb = self.TN*2; self.rows_per = 1024//self.rowb
        self.fr = (NB+MB)*8; self.F0 = 48
        self.vL = 1
        self.vXrd = [2, 3]; self.vW = [[list(range(4+8*hi+4*hb, 4+8*hi+4*hb+NB)) for hb in range(2)] for hi in range(2)]
        self.vXd = 20; self.vWd = [21, 22, 23, 24]; self.vWk = [25, 26, 27, 28]; self.vWc = [29, 30, 31, 32]
        self.vXl = 33; self.vOl = 34; self.vO = 35; self.t = list(range(36, 44))
        self.lds = S*self.SLOT
        assert self.lds <= 131072 and S % 2 == 0
    def xf(self, p, mb, hb): return self.F0 + p*self.fr + (hb*(self.NB+self.MB) + mb)*4
    def wf(self, p, nb, hb): return self.F0 + p*self.fr + (hb*(self.NB+self.MB) + self.MB + nb)*4
    def acc(self, nb, nh, mb, mh): return (nb*self.MB+mb)*16 + (mh*2+nh)*4
    def init(self):
        a, t, NB, MB = self.a, self.t, self.NB, self.MB
        L = self.vL
        a(f'v_lshrrev_b32 v{t[0]}, 6, v0\ns_nop 0\nv_readfirstlane_b32 s{self.sWv}, v{t[0]}\nv_and_b32 v{L}, 63, v0')
        a(f's_and_b32 s{self.sWn_}, s{self.sWv}, 1\ns_lshr_b32 s{self.sWm_}, s{self.sWv}, 1')
        def fsw(dst, sh):
            a(f'v_bfe_u32 v{t[4]}, v{L}, {sh}, 1\nv_bfe_u32 v{t[5]}, v{L}, {sh+1}, 1\nv_xor_b32 v{t[4]}, v{t[4]}, v{t[5]}\nv_lshl_add_u32 v{dst}, v{t[4]}, 1, v{t[5]}')
        fsw(t[2], 2)
        a(f'v_and_b32 v{t[0]}, 15, v{L}\nv_lshrrev_b32 v{t[1]}, 4, v{L}\nv_xor_b32 v{t[1]}, v{t[1]}, v{t[2]}\nv_lshlrev_b32 v{t[1]}, 4, v{t[1]}\nv_lshl_add_u32 v{t[1]}, v{t[0]}, 6, v{t[1]}')
        a(f's_mul_i32 s{self.sT[0]}, s{self.sWm_}, {MB*32*64}\nv_add_u32 v{self.vXrd[0]}, s{self.sT[0]}, v{t[1]}\nv_add_u32 v{self.vXrd[1]}, 65536, v{self.vXrd[0]}')
        a(f'v_bfe_u32 v{t[0]}, v{L}, 2, 2\nv_lshrrev_b32 v{t[1]}, 4, v{L}\nv_lshl_add_u32 v{t[1]}, v{t[1]}, 3, v{t[0]}\nv_mul_u32_u24 v{t[1]}, {self.rowb}, v{t[1]}')
        a(f'v_and_b32 v{t[2]}, 3, v{L}\nv_lshlrev_b32 v{t[2]}, 3, v{t[2]}\nv_bfe_u32 v{t[3]}, v{L}, 4, 1\nv_lshl_add_u32 v{t[2]}, v{t[3]}, 5, v{t[2]}\nv_add_u32 v{t[1]}, v{t[1]}, v{t[2]}\nv_add_u32 v{t[1]}, {self.XS}, v{t[1]}')
        a(f's_mul_i32 s{self.sT[0]}, s{self.sWn_}, {NB}')
        for nb in range(NB):
            r = self.vW[0][0][nb]
            a(f's_add_u32 s{self.sT[1]}, s{self.sT[0]}, {nb}\nv_xor_b32 v{t[2]}, s{self.sT[1]}, v{t[0]}\nv_lshl_add_u32 v{r}, v{t[2]}, 6, v{t[1]}')
            a(f'v_xor_b32 v{self.vW[0][1][nb]}, 32, v{r}\nv_add_u32 v{self.vW[1][0][nb]}, 65536, v{r}\nv_add_u32 v{self.vW[1][1][nb]}, 65536, v{self.vW[0][1][nb]}')
        fsw(t[1], 4)
        a(f'v_and_b32 v{t[0]}, 3, v{L}\nv_xor_b32 v{t[0]}, v{t[0]}, v{t[1]}\nv_lshlrev_b32 v{t[0]}, 4, v{t[0]}\nv_lshrrev_b32 v{t[1]}, 2, v{L}\nv_lshl_add_u32 v{t[0]}, v{t[1]}, 6, v{t[0]}')
        a(f's_mul_i32 s{self.sM0x}, s{self.sWv}, {self.nxd*1024}\nv_add_u32 v{self.vXl}, s{self.sM0x}, v{t[0]}')
        lpr = 64//self.rows_per
        for j in range(self.nwd):
            k, c = self.vWk[j], self.vWc[j]
            a(f's_mul_i32 s{self.sT[0]}, s{self.sWv}, {self.nwd*self.rows_per}\ns_add_u32 s{self.sT[0]}, s{self.sT[0]}, {j*self.rows_per}')
            a(f'v_lshrrev_b32 v{k}, {lpr.bit_length()-1}, v{L}\nv_add_u32 v{k}, s{self.sT[0]}, v{k}')
            a(f'v_and_b32 v{t[1]}, 3, v{k}\nv_lshlrev_b32 v{t[1]}, 2, v{t[1]}\nv_and_b32 v{t[2]}, {lpr-1}, v{L}\nv_xor_b32 v{t[1]}, v{t[1]}, v{t[2]}')
            a(f'v_bfe_u32 v{t[2]}, v{k}, 3, 1\nv_lshlrev_b32 v{t[2]}, 1, v{t[2]}\nv_xor_b32 v{t[1]}, v{t[1]}, v{t[2]}\nv_lshlrev_b32 v{c}, 4, v{t[1]}\nv_subrev_u32 v{c}, {j*1024}, v{c}')
        a(f's_mul_i32 s{self.sM0w}, s{self.sWv}, {self.nwd*1024}\ns_add_u32 s{self.sM0w}, s{self.sM0w}, {self.XS}')
        a(f'v_bfe_u32 v{t[1]}, v{L}, 4, 1\nv_lshlrev_b32 v{t[1]}, 5, v{t[1]}\nv_bfe_u32 v{t[2]}, v{L}, 5, 1\nv_lshl_add_u32 v{self.vOl}, v{t[2]}, 4, v{t[1]}')
    def setup(self):
        a = self.a
        a(f'v_add_u32 v{self.vXd}, s{self.sXo}, v{self.vXl}')
        for j in range(self.nwd):
            a(f'v_mul_lo_u32 v{self.vWd[j]}, v{self.vWk[j]}, s{self.sLdb}\nv_add_u32 v{self.vWd[j]}, v{self.vWd[j]}, v{self.vWc[j]}\nv_add_u32 v{self.vWd[j]}, s{self.sWn}, v{self.vWd[j]}')
        a(f's_mov_b32 s{self.sXs}, 0\ns_mov_b32 s{self.sWs}, 0\ns_lshl_b32 s{self.sWstep}, s{self.sLdb}, 5')
    def dma(self, slot):
        L = []
        for j in range(self.nxd):
            pre = f's_add_u32 m0, s{self.sM0x}, {slot*self.SLOT}\ns_nop 0\n' if j == 0 else ''
            post = f'\ns_add_u32 s{self.sXs}, s{self.sXs}, {M*64}' if j == self.nxd-1 else ''
            L.append(pre + f'buffer_load_dwordx4 v{self.vXd}, s[{self.SRD_XD}:{self.SRD_XD+3}], s{self.sXs} offen offset:{j*1024} lds' + post)
        for j in range(self.nwd):
            pre = f's_add_u32 m0, s{self.sM0w}, {slot*self.SLOT}\ns_nop 0\n' if j == 0 else ''
            post = f'\ns_add_u32 s{self.sWs}, s{self.sWs}, s{self.sWstep}' if j == self.nwd-1 else ''
            L.append(pre + f'buffer_load_dwordx4 v{self.vWd[j]}, s[{self.SRD_W}:{self.SRD_W+3}], s{self.sWs} offen offset:{j*1024} lds' + post)
        return L
    def reads(self, slot, p):
        L = []
        for i in range(max(self.NB, self.MB)):
            for hb in range(2):
                if i < self.NB:
                    for hh in range(2):
                        o = slot*self.SLOT + hh*4*self.rowb; hi = int(o >= 65536)
                        L.append(f'ds_read_b64_tr_b16 {vr(self.wf(p,i,hb)+2*hh,2)}, v{self.vW[hi][hb][i]} offset:{o-65536*hi}')
                if i < self.MB:
                    o = slot*self.SLOT + i*2048 + hb*1024; hi = int(o >= 65536)
                    L.append(f'ds_read_b128 {vr(self.xf(p,i,hb),4)}, v{self.vXrd[hi]} offset:{o-65536*hi}')
        return L
    def mfmas(self, p, zero=False):
        return [f'v_mfma_f32_16x16x32_bf16 {ar(self.acc(nb,nh,mb,mh),4)}, {vr(self.wf(p,nb,nh),4)}, {vr(self.xf(p,mb,mh),4)}, {0 if zero else ar(self.acc(nb,nh,mb,mh),4)}'
                for nb in range(self.NB) for nh in range(2) for mb in range(self.MB) for mh in range(2)]
    def prologue(self, zero=True):
        a = self.a
        a('s_barrier')
        for s in range(self.S):
            for x in self.dma(s): a(x)
        if zero:
            for i in range(self.NB*self.MB*16): a(f'v_accvgpr_write_b32 a{i}, 0')
        a(f's_waitcnt vmcnt({self.nd*(self.S-1)})\ns_barrier')
        for x in self.reads(0, 0): a(x)
        a(f's_mov_b32 s{self.sCnt}, s{self.sNK}')
    def trip(self, first=False, extra=0, post=None):
        a = self.a
        for u in range(self.S):
            p = u & 1
            R = self.reads((u+1) % self.S, p ^ 1); D = self.dma(u)
            fill = []; ri = di = 0; step = max(1, len(R)//len(D))
            while ri < len(R) or di < len(D):
                for _ in range(step):
                    if ri < len(R): fill.append(R[ri]); ri += 1
                if di < len(D): fill.append(D[di]); di += 1
            m = self.mfmas(p, first and u == 0)
            a(f's_waitcnt vmcnt({self.nd*(self.S-2) + (extra if u < self.S-1 else 0)}) lgkmcnt(0)\ns_barrier')
            if post and u == self.S-1: post(a)
            for x in spread(m, fill, 0, len(m)-6): a(x)
    def loop(self, tag, hook=None):
        a = self.a
        a('.p2align 6'); a.lab(f'{self.name}_loop{tag}')
        if hook: hook(a)
        self.trip()
        a(f's_sub_u32 s{self.sCnt}, s{self.sCnt}, 1\ns_cmp_lg_u32 s{self.sCnt}, 0\ns_cbranch_scc1 {self.name}_loop{tag}')
    def epilogue_kb(self, sOo, relu, sc=''):
        a, t = self.a, self.t
        a('s_waitcnt lgkmcnt(0)')
        a(f'v_and_b32 v{t[0]}, 15, v{self.vL}\nv_lshl_add_u32 v{t[0]}, v{t[0]}, 6, v{self.vOl}')
        a(f's_mul_i32 s{self.sT[0]}, s{self.sWn_}, {self.NB*M*64}\ns_mul_i32 s{self.sT[1]}, s{self.sWm_}, {self.MB*2048}\ns_add_u32 s{self.sT[0]}, s{self.sT[0]}, s{self.sT[1]}\ns_add_u32 s{self.sT[0]}, s{self.sT[0]}, s{sOo}')
        a(f'v_add_u32 v{self.vO}, s{self.sT[0]}, v{t[0]}\ns_nop 7')
        for nb in range(self.NB):
            for mb in range(self.MB):
                T = self.F0 + self.fr + ((nb*self.MB+mb) % 2)*24
                if mb % 2 == 0: a(f's_mov_b32 s{self.sT[2]}, {nb*M*64 + mb*2048}')
                for r in range(16): a(f'v_accvgpr_read_b32 v{T+8+r}, a{self.acc(nb,0,mb,0)+r}')
                for r in range(8): a(f'v_cvt_pk_bf16_f32 v{T+r}, v{T+8+2*r}, v{T+9+2*r}')
                for r in range(8): a(f'v_pk_max_i16 v{T+r}, v{T+r}, s{relu}')
                a(f's_nop 1\nv_permlane16_swap_b32 v{T}, v{T+2}\nv_permlane16_swap_b32 v{T+1}, v{T+3}\nv_permlane16_swap_b32 v{T+4}, v{T+6}\nv_permlane16_swap_b32 v{T+5}, v{T+7}')
                o = (mb % 2)*2048
                W = f's[{self.SRD_WS}:{self.SRD_WS+3}]'
                a(f'buffer_store_dwordx4 {vr(T,4)}, v{self.vO}, {W}, s{self.sT[2]} offen offset:{o}{sc}\nbuffer_store_dwordx4 {vr(T+4,4)}, v{self.vO}, {W}, s{self.sT[2]} offen offset:{o+1024}{sc}')
    def epilogue_out(self, sOo, SRD_X):
        a, t = self.a, self.t
        a('s_waitcnt lgkmcnt(0)')
        a(f'v_and_b32 v{t[0]}, 15, v{self.vL}\nv_lshl_add_u32 v{t[0]}, v{t[0]}, 11, v{self.vOl}')
        a(f's_mul_i32 s{self.sT[0]}, s{self.sWn_}, {self.NB*64}\ns_mul_i32 s{self.sT[1]}, s{self.sWm_}, {self.MB*32*2048}\ns_add_u32 s{self.sT[0]}, s{self.sT[0]}, s{self.sT[1]}\ns_add_u32 s{self.sT[0]}, s{self.sT[0]}, s{sOo}')
        a(f'v_add_u32 v{self.vO}, s{self.sT[0]}, v{t[0]}\ns_mov_b32 s{self.sT[3]}, 0xffff0000')
        XR = self.F0 + 48
        n = 0
        for mb in range(self.MB):
            for mh in range(2):
                a(f's_mov_b32 s{self.sT[2]}, {(mb*32+mh*16)*2048}')
                for nb in range(self.NB):
                    a(f'buffer_load_dwordx4 {vr(XR+4*n,4)}, v{self.vO}, s[{SRD_X}:{SRD_X+3}], s{self.sT[2]} offen offset:{nb*64}'); n += 1
        a('s_nop 7')
        n = 0; tot = self.MB*2*self.NB
        for mb in range(self.MB):
            for mh in range(2):
                a(f's_mov_b32 s{self.sT[2]}, {(mb*32+mh*16)*2048}')
                for nb in range(self.NB):
                    T = self.F0 + (n % 2)*16
                    for r in range(8): a(f'v_accvgpr_read_b32 v{T+r}, a{self.acc(nb,0,mb,mh)+r}')
                    a('s_nop 1')
                    for r in range(4): a(f'v_permlane16_swap_b32 v{T+r}, v{T+4+r}')
                    a(f's_waitcnt vmcnt({tot-1})')
                    for r in range(4):
                        a(f'v_lshlrev_b32 v{T+8}, 16, v{XR+4*n+r}\nv_and_b32 v{T+9}, s{self.sT[3]}, v{XR+4*n+r}\nv_add_f32 v{T+2*r}, v{T+2*r}, v{T+8}\nv_add_f32 v{T+2*r+1}, v{T+2*r+1}, v{T+9}')
                        a(f'v_cvt_pk_bf16_f32 v{T+12+r}, v{T+2*r}, v{T+2*r+1}')
                    a(f'buffer_store_dwordx4 {vr(T+12,4)}, v{self.vO}, s[{self.SRD_O}:{self.SRD_O+3}], s{self.sT[2]} offen offset:{nb*64}')
                    n += 1
    def epilogue_part(self, sOo, sXr, SRD_X, sc=''):
        a, t = self.a, self.t
        a('s_waitcnt lgkmcnt(0)')
        a(f'v_and_b32 v{t[0]}, 15, v{self.vL}\nv_lshl_add_u32 v{t[0]}, v{t[0]}, 11, v{self.vOl}')
        a(f's_mul_i32 s{self.sT[0]}, s{self.sWn_}, {self.NB*64}\ns_mul_i32 s{self.sT[1]}, s{self.sWm_}, {self.MB*32*2048}\ns_add_u32 s{self.sT[0]}, s{self.sT[0]}, s{self.sT[1]}')
        a(f'v_add_u32 v{t[0]}, s{self.sT[0]}, v{t[0]}\nv_add_u32 v{self.vO}, s{sXr}, v{t[0]}\nv_lshlrev_b32 v{t[0]}, 1, v{t[0]}\nv_add_u32 v{t[1]}, s{sOo}, v{t[0]}\ns_mov_b32 s{self.sT[3]}, 0xffff0000')
        XR = self.F0 + 48
        n = 0
        for mb in range(self.MB):
            for mh in range(2):
                a(f's_mov_b32 s{self.sT[2]}, {(mb*32+mh*16)*2048}')
                for nb in range(self.NB):
                    a(f'buffer_load_dwordx4 {vr(XR+4*n,4)}, v{self.vO}, s[{SRD_X}:{SRD_X+3}], s{self.sT[2]} offen offset:{nb*64}'); n += 1
        a('s_nop 7')
        n = 0; tot = self.MB*2*self.NB
        W = f's[{self.SRD_WS}:{self.SRD_WS+3}]'
        for mb in range(self.MB):
            for mh in range(2):
                a(f's_mov_b32 s{self.sT[2]}, {(mb*32+mh*16)*4096}')
                for nb in range(self.NB):
                    T = self.F0 + (n % 2)*16
                    for r in range(8): a(f'v_accvgpr_read_b32 v{T+r}, a{self.acc(nb,0,mb,mh)+r}')
                    a('s_nop 1')
                    for r in range(4): a(f'v_permlane16_swap_b32 v{T+r}, v{T+4+r}')
                    a(f's_waitcnt vmcnt({tot-1+n})')
                    for r in range(4):
                        a(f'v_lshlrev_b32 v{T+8}, 16, v{XR+4*n+r}\nv_and_b32 v{T+9}, s{self.sT[3]}, v{XR+4*n+r}\nv_add_f32 v{T+2*r}, v{T+2*r}, v{T+8}\nv_add_f32 v{T+2*r+1}, v{T+2*r+1}, v{T+9}')
                    a(f'buffer_store_dwordx4 {vr(T,4)}, v{t[1]}, {W}, s{self.sT[2]} offen offset:{nb*128}{sc}\nbuffer_store_dwordx4 {vr(T+4,4)}, v{t[1]}, {W}, s{self.sT[2]} offen offset:{nb*128+16}{sc}')
                    n += 1
    def epilogue_fin(self, sOo, sPo):
        a, t = self.a, self.t
        a('s_waitcnt lgkmcnt(0)')
        a(f'v_and_b32 v{t[0]}, 15, v{self.vL}\nv_lshl_add_u32 v{t[0]}, v{t[0]}, 11, v{self.vOl}')
        a(f's_mul_i32 s{self.sT[0]}, s{self.sWn_}, {self.NB*64}\ns_mul_i32 s{self.sT[1]}, s{self.sWm_}, {self.MB*32*2048}\ns_add_u32 s{self.sT[0]}, s{self.sT[0]}, s{self.sT[1]}')
        a(f'v_add_u32 v{t[0]}, s{self.sT[0]}, v{t[0]}\nv_add_u32 v{self.vO}, s{sOo}, v{t[0]}\nv_lshlrev_b32 v{t[0]}, 1, v{t[0]}\nv_add_u32 v{t[1]}, s{sPo}, v{t[0]}')
        XR = self.F0 + 48
        W = f's[{self.SRD_WS}:{self.SRD_WS+3}]'
        n = 0
        for mb in range(self.MB):
            for mh in range(2):
                a(f's_mov_b32 s{self.sT[2]}, {(mb*32+mh*16)*4096}')
                for nb in range(self.NB):
                    a(f'buffer_load_dwordx4 {vr(XR+8*n,4)}, v{t[1]}, {W}, s{self.sT[2]} offen offset:{nb*128} sc1\nbuffer_load_dwordx4 {vr(XR+8*n+4,4)}, v{t[1]}, {W}, s{self.sT[2]} offen offset:{nb*128+16} sc1'); n += 1
        a('s_nop 7')
        n = 0; tot = self.MB*2*self.NB
        for mb in range(self.MB):
            for mh in range(2):
                a(f's_mov_b32 s{self.sT[2]}, {(mb*32+mh*16)*2048}')
                for nb in range(self.NB):
                    T = self.F0 + (n % 2)*16
                    for r in range(8): a(f'v_accvgpr_read_b32 v{T+r}, a{self.acc(nb,0,mb,mh)+r}')
                    a('s_nop 1')
                    for r in range(4): a(f'v_permlane16_swap_b32 v{T+r}, v{T+4+r}')
                    a(f's_waitcnt vmcnt({2*(tot-1-n)+n})')
                    for r in range(8): a(f'v_add_f32 v{T+r}, v{T+r}, v{XR+8*n+r}')
                    for r in range(4): a(f'v_cvt_pk_bf16_f32 v{T+12+r}, v{T+2*r}, v{T+2*r+1}')
                    a(f'buffer_store_dwordx4 {vr(T+12,4)}, v{self.vO}, s[{self.SRD_O}:{self.SRD_O+3}], s{self.sT[2]} offen offset:{nb*64}')
                    n += 1
    def epilogue_split(self, sSc, sc=' sc1'):
        a, t = self.a, self.t
        W = f's[{self.SRD_WS}:{self.SRD_WS+3}]'
        a(f's_lshl_b32 s{self.sT[0]}, s{self.sWv}, 14\ns_add_u32 s{self.sT[0]}, s{self.sT[0]}, s{sSc}\nv_lshlrev_b32 v{t[0]}, 4, v{self.vL}\ns_nop 7')
        for b in range(self.NB*self.MB*4):
            if b and b % 4 == 0: a(f's_add_u32 s{self.sT[0]}, s{self.sT[0]}, 4096')
            a(f'buffer_store_dwordx4 {ar(4*b,4)}, v{t[0]}, {W}, s{self.sT[0]} offen offset:{(b%4)*1024}{sc}')
    def combine(self, n, sJ, sSc0, sOo, sPo):
        a, t, sT = self.a, self.t, self.sT
        W = f's[{self.SRD_WS}:{self.SRD_WS+3}]'
        per = 8//n; B = self.F0
        a(f'v_and_b32 v{t[0]}, 15, v{self.vL}\nv_lshl_add_u32 v{t[0]}, v{t[0]}, 11, v{self.vOl}\nv_lshlrev_b32 v{t[1]}, 1, v{t[0]}\nv_lshlrev_b32 v{t[2]}, 4, v{self.vL}')
        for k in range(per):
            R = B + k*(8*n+8)
            a(f's_mul_i32 s{sT[0]}, s{sJ}, {per}\ns_add_u32 s{sT[0]}, s{sT[0]}, {k}\ns_lshl_b32 s{sT[1]}, s{self.sWv}, 3\ns_add_u32 s{sT[1]}, s{sT[1]}, s{sT[0]}\ns_lshl_b32 s{sT[1]}, s{sT[1]}, 11\ns_add_u32 s{sT[1]}, s{sT[1]}, s{sSc0}')
            for j in range(n):
                a(f'buffer_load_dwordx4 {vr(R+8*j,4)}, v{t[2]}, {W}, s{sT[1]} offen sc1\nbuffer_load_dwordx4 {vr(R+8*j+4,4)}, v{t[2]}, {W}, s{sT[1]} offen offset:1024 sc1\ns_add_u32 s{sT[1]}, s{sT[1]}, 65536')
            a(f's_and_b32 s{sT[1]}, s{sT[0]}, 3\ns_lshl_b32 s{sT[1]}, s{sT[1]}, 15\ns_lshl_b32 s{sT[2]}, s{self.sWm_}, 17\ns_add_u32 s{sT[1]}, s{sT[1]}, s{sT[2]}')
            a(f's_lshr_b32 s{sT[0]}, s{sT[0]}, 2\ns_lshl_b32 s{sT[0]}, s{sT[0]}, 6\ns_add_u32 s{sT[1]}, s{sT[1]}, s{sT[0]}\ns_lshl_b32 s{sT[0]}, s{self.sWn_}, 7\ns_add_u32 s{24+k%2}, s{sT[1]}, s{sT[0]}')
            a(f's_lshl_b32 s{sT[0]}, s{24+k%2}, 1\ns_add_u32 s{sT[0]}, s{sT[0]}, s{sPo}\ns_add_u32 s{24+k%2}, s{24+k%2}, s{sOo}')
            a(f'buffer_load_dwordx4 {vr(R+8*n,4)}, v{t[1]}, {W}, s{sT[0]} offen sc1\nbuffer_load_dwordx4 {vr(R+8*n+4,4)}, v{t[1]}, {W}, s{sT[0]} offen offset:16 sc1')
            if k % 2 == 1 or k == per-1:
                for kk in range(k - k % 2, k+1):
                    R = B + kk*(8*n+8)
                    a(f's_waitcnt vmcnt({(k-kk)*(2*n+2) + (kk % 2)})')
                    for j in range(1, n):
                        for r in range(8): a(f'v_add_f32 v{R+r}, v{R+r}, v{R+8*j+r}')
                    a('s_nop 1')
                    for r in range(4): a(f'v_permlane16_swap_b32 v{R+r}, v{R+4+r}')
                    for r in range(8): a(f'v_add_f32 v{R+r}, v{R+r}, v{R+8*n+r}')
                    for r in range(4): a(f'v_cvt_pk_bf16_f32 v{R+8+r}, v{R+2*r}, v{R+2*r+1}')
                    a(f'buffer_store_dwordx4 {vr(R+8,4)}, v{t[0]}, s[{self.SRD_O}:{self.SRD_O+3}], s{24+kk%2} offen')
```

```python
M = 2048
MBY = 1 << 20
WS_SIZE = 256 * MBY
OFF_C    = 0
OFF_BC   = 0
OFF_D    = 0x300000
OFF_A    = 0x330000
OFF_B    = 0x3F0000
OFF_TAB  = 0x570000
ARM_END  = 0x578000
OFF_CNT  = 0x580000
OFF_PAR  = 0x581000
OFF_T    = 6 * MBY
OFF_XN   = 8 * MBY
OFF_K    = 16 * MBY
OFF_V    = 32 * MBY
OFF_Q    = 48 * MBY
OFF_H    = 64 * MBY
OFF_O    = 78 * MBY
OFF_KM   = 96 * MBY
OFF_VM   = 100 * MBY
OFF_STAMP= 104 * MBY
OFF_PART = 112 * MBY
TAB_KV   = OFF_TAB
TAB_H    = OFF_TAB + 0xA00
TAB_Q    = OFF_TAB + 0xC00
TAB_PR   = OFF_TAB + 0x1000
TAB_O    = OFF_TAB + 0x2000
TAB_T    = OFF_TAB + 0x4000
OFF_SCR  = 128 * MBY
ARM_SEGS = [(OFF_C, OFF_C + 0xC0000), (OFF_D, ARM_END)]
OOB = 0x80000000
```

```python
def plan(t_r3=98., t_r4=120., tc0=23., dt=2.45, tF=24., tS=26., tA4=4.0, tA1=1.3, splits={12:4, 13:4, 14:4, 15:8}, verbose=False, late_n=12, nback=40):
    seg_ready = lambda s: tc0 + (s+1)*dt + 1.5 if s < 63 else tc0 + 63*dt + 1.2
    W = [(gx, sl) for gx in range(4) for sl in range(32)]
    free = {w: (t_r4 if w[1] < late_n else t_r3) for w in W}
    lists = {w: [] for w in W}
    fdone = {}; adone = {}
    tA = lambda J: tA1 + (tA4 - tA1)*(J['nw']-1)/3
    heads = lambda J: range(J['j']*32//J['n'], (J['j']+1)*32//J['n'])
    def put(w, J):
        t = free[w]
        if J['k'] == 'F': st = max(t, t_r3 + 3); e = st + tF; fdone[(J['r'], J['tn'])] = e
        elif J['k'] == 'A':
            st = e = max(t, seg_ready(J['segs'][0]))
            for s in J['segs']:
                e = max(e, seg_ready(s)) + tA(J)
                for h in range(J['h0'], J['h0']+J['nw']): adone[(s, h)] = e
        else:
            st = max([t] + [adone[(s, h)] + 0.7 for s in range(4*J['r'], 4*J['r']+4) for h in heads(J)])
            e = max(st + (tS if J['n'] == 1 else 2.0 + (tS-2.5)/J['n'] + 4.5), fdone[(J['r'], J['tn'])] + 2.5)
        J['t'] = (st, e); lists[w].append(J); free[w] = e
    A = lambda segs, h0, nw: dict(k='A', r=segs[0]//4, segs=list(segs), h0=h0, nw=nw)
    early = [w for w in W if w[1] >= late_n]
    for s in range(0, nback, 2):
        for hq in range(8): put(min(early, key=lambda w: free[w]), A([s, s+1], 4*hq, 4))
    for gx in range(4):
        ws = sorted((w for w in W if w[0] == gx), key=lambda w: -free[w])
        for k, w in enumerate(ws): put(w, dict(k='F', r=gx + 4*(k//8), tn=k % 8))
    serve = [w for w in W if lists[w][-1]['r'] in splits]
    for h, w in enumerate(serve):
        J = dict(k='A', r=nback//4, segs=list(range(nback, 64)), h0=h, nw=1, byseg=True)
        t0 = free[w]; end = t0
        for wv in range(4):
            e = t0
            for s in J['segs'][wv::4]:
                late = e > seg_ready(s)
                e = max(e, seg_ready(s)) + (tA4 if late else tA1); adone[(s, h)] = e
            end = max(end, e)
        J['t'] = (t0, end); lists[w].append(J); free[w] = end
    for w in W:
        if w not in serve: put(w, dict(k='O', r=lists[w][-1]['r'], tn=lists[w][-1]['tn'], n=1, j=0))
    for r in sorted(splits):
        used = set(); n = splits[r]
        for j in range(n):
            rd = max(adone[(s, h)] for s in range(4*r, 4*r+4) for h in range(j*32//n, (j+1)*32//n))
            def eight(gx): return sorted((w for w in W if w[0] == gx and w not in used), key=lambda w: (max(free[w], rd), -free[w]))[:8]
            ws = min((eight(gx) for gx in range(4)), key=lambda L: (max(max(free[w], rd) for w in L), -min(free[w] for w in L)) if len(L) == 8 else (1e9, 0))
            for tn, w in enumerate(ws):
                used.add(w); put(w, dict(k='O', r=r, tn=tn, n=n, j=j))
    Tend = max(free.values())
    pos = {w: 0 for w in lists}; stored = set(); prog = True
    fd = set(); ad = set()
    while prog:
        prog = False
        for w in lists:
            while pos[w] < len(lists[w]):
                J = lists[w][pos[w]]
                if J['k'] == 'F': fd.add((J['r'], J['tn']))
                elif J['k'] == 'A': ad.update((s, h) for s in J['segs'] for h in range(J['h0'], J['h0']+J['nw']))
                else:
                    if any((s, h) not in ad for s in range(4*J['r'], 4*J['r']+4) for h in heads(J)): break
                    if (J['r'], J['tn'], J['j']) not in stored: stored.add((J['r'], J['tn'], J['j'])); prog = True
                    if (J['r'], J['tn']) not in fd or any((J['r'], J['tn'], j) not in stored for j in range(J['n'])): break
                pos[w] += 1; prog = True
    assert all(pos[w] == len(lists[w]) for w in lists), 'schedule can deadlock'
    assert len(ad) == 2048 and len(fd) == 128
    if verbose:
        for w in sorted(lists):
            if w[0] in (0,): print(w, ' '.join('%s%d%s[%.0f-%.0f]' % (J['k'], J['r'], '' if J['k'] != 'O' else '/%d' % J['n'], *J['t']) for J in lists[w]))
        print('chain end', tc0 + 63*dt, 'all done', Tend, 'max jobs', max(len(v) for v in lists.values()))
    return lists, Tend
if __name__ == '__main__':
    plan(verbose=True)
    for nb in (32, 36, 40):
        for tc0,dt,r3,r4 in ((23,2.45,98,120),(20,2.3,94,115),(18,2.15,86,106)):
            print(nb,tc0,dt,r3,r4,'chain %.1f'%(tc0+63*dt),'end %.1f'%plan(t_r3=r3,t_r4=r4,tc0=tc0,dt=dt,nback=nb)[1])
```

```python
import sys
from asmlib import *
from layout import *
from start_gen import rows_issue, rows_finish, fill_issue
from gemm_gen import Gemm
from attn_gen import Attn
from sched import plan
from chain5_gen import gen_chain, CHAIN_LDS
KN = 'parallel_sum__memory_aug_recurrent_mem_tr__dense_activation_relu__prompt'
NJ = 20
T_BIG, T_TILE, T_WIDE, T_ATT, T_END = 16, 32, 48, 64, 255
OUTB = [OFF_K, OFF_V, OFF_Q, OFF_H]

def schedule(**pk):
    def big(mat, tm, tn):
        if mat < 2: f = [TAB_KV + tm*256 + (2*tn+k)*8 + 4*mat for k in range(2)]
        elif mat == 3: f = [TAB_H + tm*64 + tn*4, OOB]
        else: f = [TAB_Q + tm*64 + tn*4, OOB]
        return [T_BIG + mat, OFF_XN + tm*16384, tn*512, OUTB[mat] + tn*8*131072 + tm*16384, f[0], f[1], 0, 0]
    def rec(J):
        if J['k'] == 'A':
            if J.get('byseg'): return [T_ATT, J['segs'][0], len(J['segs'])//4, J['h0'], 4, 0, 1, 4]
            return [T_ATT, J['segs'][0], len(J['segs']), J['h0'], J['nw'], 1, 0, 1]
        r, tn = J['r'], J['tn']; tt = TAB_T + (r*8+tn)*64; oo = r*128*2048 + tn*256
        hold = 8 if J.get('hold') else 0
        if J['k'] == 'F': return [T_TILE + hold + (14 << 8), OFF_H + r*8192, tn*256, oo, tt, tt, TAB_H + (r >> 1)*64, (14 << 8) | (16 << 16)]
        n, j = J['n'], J['j']; kb0 = j*128//n
        return [T_TILE + 1 + hold + (2 if n == 1 else 4) + ((16//n) << 8) + (n << 16) + (j << 20), OFF_O + kb0*131072 + r*8192, tn*256 + kb0*32*2048, oo,
                tt + 4 + 4*j if n > 1 else OOB, tt, TAB_O + r*512, (kb0//4) | ((32//n) << 8) | (64 << 16)]
    post, _ = plan(**pk)
    for L in post.values():
        for x, y in zip(L, L[1:]):
            if x['k'] == 'F' and y['k'] == 'O' and y['n'] == 1 and (x['r'], x['tn']) == (y['r'], y['tn']): x['hold'] = y['hold'] = True
    J = []
    for gx in range(4):
        for sl in range(32):
            L = []
            tm2, tn = sl & 1, gx*16 + (sl >> 1); mat, h = tn >> 5, tn & 31
            for rb in range(2):
                L.append([mat, OFF_XN + (2*rb+tm2)*8192, h*256, OUTB[mat] + h*4*131072 + (2*rb+tm2)*8192, TAB_KV + (8+rb if tm2 else rb)*256 + h*8 + 4*mat, OOB, 0, 0])
            tnn = gx*8 + (sl >> 2); L.append(big(tnn >> 4, 2 + (sl & 3), tnn & 15))
            L.append(big(2, sl & 7, gx*4 + (sl >> 3)))
            if sl >= 4: i = gx*28 + sl-4; L.append(big(3, i % 8, i//8))
            kv = [(tm, gx*8 + k) for tm in (6, 7) for k in range(8)]
            if sl < 4: L.append(big(kv[sl][1] >> 4, kv[sl][0], kv[sl][1] & 15))
            if sl < 12: L.append(big(kv[4+sl][1] >> 4, kv[4+sl][0], kv[4+sl][1] & 15))
            L += [rec(x) for x in post[(gx, sl)]]
            assert len(L) < NJ
            L += [[T_END] + [0]*7]*(NJ - len(L))
            J.append(L)
    return J

def gen_main(name, **kw):
    a = Asm(); a(khead(name)); END = name+'_end'
    sB, sMode = 96, 97
    a(f's_cmp_ge_u32 s2, 256\ns_cbranch_scc1 {END}')
    pk = kw.pop('pk', {})
    V0 = 180
    a(f's_load_dwordx2 s[8:9], s[0:1], 96\ns_load_dwordx2 s[16:17], s[0:1], 88\ns_mov_b32 s10, {WS_SIZE}\ns_mov_b32 s11, 0x20000\ns_mov_b32 s{sB}, s2\ns_mov_b32 s{sMode}, 0')
    a(f's_mov_b32 s18, 256\ns_mov_b32 s19, 0x20000\ns_getreg_b32 s2, hwreg(HW_REG_XCC_ID)\ns_and_b32 s2, s2, 7\ns_lshr_b32 s3, s{sB}, 3\ns_mov_b32 s4, 0')
    if kw.get('light'): a('s_memrealtime s[50:51]')
    V0 = 160
    lp = name+'_np'
    a(f'v_readfirstlane_b32 s20, v0\ns_or_b32 s21, s3, s2\ns_xor_b32 s20, s20, 192\ns_or_b32 s20, s20, s21\ns_cmp_lg_u32 s20, 0\ns_cbranch_scc1 {lp}')
    a(f's_mov_b32 s24, -1\ns_mov_b32 s25, -1\nv_mov_b32 v{V0+44}, -1\nv_mov_b32 v{V0+48}, 0x1f0000\ns_waitcnt lgkmcnt(0)\nbuffer_store_dword v{V0+44}, v{V0+48}, s[8:11], 0 offen sc1\ns_waitcnt vmcnt(0)')
    for k in range(kw.pop('nprobe', 6)):
        for h in range(2):
            a(f'v_mov_b32 v{V0+48}, {0x100000 + k*16640 + h*8192}\ns_memtime s[26:27]\ns_waitcnt lgkmcnt(0)\nbuffer_store_dword v{V0+44}, v{V0+48}, s[8:11], 0 offen sc1\ns_waitcnt vmcnt(0)')
            a(f's_memtime s[28:29]\ns_waitcnt lgkmcnt(0)\ns_sub_u32 s28, s28, s26\ns_min_u32 s{24+h}, s{24+h}, s28')
    a('s_cmp_lt_u32 s25, s24\ns_cselect_b32 s4, 48, 32')
    if kw.get('light'): a(f'v_mov_b32 v5, s24\nv_mov_b32 v6, s25\nv_mov_b32 v7, {OFF_PAR}\nbuffer_store_dword v5, v7, s[8:11], 0 offen\nbuffer_store_dword v6, v7, s[8:11], 0 offen offset:4')
    a.lab(lp)
    lq = name+'_nq'
    def signal(extra=''):
        a(f's_add_u32 s5, s2, 1\n{extra}v_mov_b32 v2, {OOB}\nv_cmp_eq_u32 vcc, 192, v0\nv_mov_b32 v3, s5\nv_mov_b32 v4, s{sB}\nv_cndmask_b32 v2, v2, v4, vcc\nbuffer_store_byte v3, v2, s[16:19], 0 offen sc1')
    a(f's_bitcmp1_b32 s{sB}, 2\ns_cbranch_scc0 {lq}\ns_and_b32 s6, s{sB}, 3\ns_lshl_b32 s7, s3, 2\ns_or_b32 s6, s6, s7')
    rows_issue(a, 6, V0, 4)
    nfill = fill_issue(a, sB, V0)
    rows_finish(a, V0, 4, nfill)
    a(f's_branch {name}_sig')
    a.lab(lq)
    a('s_waitcnt lgkmcnt(0)')
    fill_issue(a, sB, V0)
    a.lab(name+'_sig')
    a('s_waitcnt vmcnt(0)\ns_barrier'); signal('s_or_b32 s5, s5, s4\n')
    a.lab(name+'_start')
    a(f's_cmp_ge_u32 s2, 4\ns_cbranch_scc1 {name}_worker\ns_cmp_eq_u32 s{sMode}, 0\ns_cbranch_scc0 {name}_safe')
    def verify(a, vt, lane, wave, par=False):
        l0, l1, ok = a.newlab(name+'_v'), a.newlab(name+'_v'), a.newlab(name+'_v')
        a(f's_cmp_eq_u32 s{sMode}, 0\ns_cbranch_scc0 {ok}\ns_mov_b32 s98, {1<<22}\ns_load_dwordx2 s[56:57], s[0:1], 88\ns_mov_b32 s58, 256\ns_mov_b32 s59, 0x20000\nv_lshlrev_b32 v{vt+4}, 2, v{lane}\ns_waitcnt lgkmcnt(0)')
        a.lab(l0)
        a(f'buffer_load_dword v{vt}, v{vt+4}, s[56:59], 0 offen sc1\ns_waitcnt vmcnt(0)')
        a(f'v_subrev_u32 v{vt+1}, 0x01010101, v{vt}\nv_and_b32 v{vt+1}, 0x80808080, v{vt+1}\nv_cmp_ne_u32 vcc, 0, v{vt+1}\ns_cbranch_vccz {l1}')
        a(f's_sub_u32 s98, s98, 1\ns_cbranch_scc1 {END}\ns_sleep 4\ns_branch {l0}')
        a.lab(l1)
        for k in range(4): a(f'v_bfe_u32 v{vt+1+(k&1)}, v{vt}, {8*k}, 4\nv_lshlrev_b32 v{vt+1+(k&1)}, v{vt+1+(k&1)}, 1\n' + (f'v_mov_b32 v{vt+3}, v{vt+1}' if k == 0 else f'v_or_b32 v{vt+3}, v{vt+3}, v{vt+1+(k&1)}'))
        a(f's_nop 1\nv_or_b32_dpp v{vt+3}, v{vt+3}, v{vt+3} quad_perm:[1,0,3,2] row_mask:0xf bank_mask:0xf')
        l2 = a.newlab(name+'_v')
        a(f'v_cmp_ne_u32 vcc, 0x1fe, v{vt+3}\ns_cbranch_vccz {l2 if par else ok}')
        a(f's_mov_b32 s{sMode}, 1\ns_mov_b32 s4, 0\ns_and_b32 s2, s{sB}, 7\ns_lshr_b32 s3, s{sB}, 3\ns_lshl_b32 s98, s{wave}, 6\nv_add_u32 v0, s98, v{lane}\ns_waitcnt vmcnt(0) lgkmcnt(0)\ns_barrier\ns_branch {name}_start')
        if par:
            a.lab(l2)
            a(f'v_and_b32 v{vt+1}, 0x20202020, v{vt}\nv_cmp_ne_u32 vcc, 0, v{vt+1}\ns_sub_u32 s98, s98, 1\ns_cbranch_scc1 {END}\ns_cbranch_vccz {l0}')
            a(f'v_and_b32 v{vt+1}, 0x10101010, v{vt}\nv_cmp_ne_u32 vcc, 0, v{vt+1}\ns_cmp_lg_u64 vcc, 0\ns_cselect_b32 s4, 1, 0')
        a.lab(ok)
    gen_chain(a, name+'_f', END, verify=lambda a: verify(a, 56, 1, 7, True), kvflags=True, progress=True, ksc=' sc1', **{k: v for k, v in kw.items() if k != 'wpf'})
    a.lab(name+'_safe')
    kw2 = {k: v for k, v in kw.items() if k not in ('stamps', 'light', 'prof', 'rt', 'wpf')}
    gen_chain(a, name+'_s', END, safe=True, kvflags=True, progress=True, ksc=' sc1', **kw2)
    a.lab(name+'_worker')
    gs = Gemm(a, name+'_gs', NB=2, MB=2, S=8); gb = Gemm(a, name+'_gb')
    R, N = 76, 84
    sRelu, sF1, sF2, vZ = 46, 47, 48, 250
    light = kw.get('light')
    if light: a('s_mov_b32 s54, 0')
    a('s_load_dwordx4 s[60:63], s[0:1], 16\ns_load_dwordx2 s[64:65], s[0:1], 32\ns_load_dwordx2 s[66:67], s[0:1], 64\ns_load_dwordx2 s[68:69], s[0:1], 72\ns_load_dwordx2 s[72:73], s[0:1], 0')
    a(f's_mov_b32 s74, {M*2048}\ns_mov_b32 s75, 0x20000\ns_mov_b32 s15, 0x20000\ns_mov_b32 s92, s8\ns_mov_b32 s93, s9\ns_mov_b32 s95, 0x20000')
    a(f's_sub_u32 s5, s2, 4\ns_lshl_b32 s5, s5, 5\ns_add_u32 s5, s5, s3\ns_mov_b32 s49, s5\ns_mul_i32 s5, s5, {NJ*32}')
    a(f's_getpc_b64 s[70:71]'); a.lab(name+'_pc')
    a(f's_add_u32 s5, s5, {name}_jobs-{name}_pc\ns_add_u32 s70, s70, s5\ns_addc_u32 s71, s71, 0')
    a(f's_load_dwordx8 s[{R}:{R+7}], s[70:71], 0\ns_load_dwordx8 s[{N}:{N+7}], s[70:71], 32')
    a(f'v_mov_b32 v{vZ}, {OOB}\nv_cmp_eq_u32 vcc, 0, v0\nv_mov_b32 v{vZ+1}, 0\ns_nop 0\nv_cndmask_b32 v{vZ}, v{vZ}, v0, vcc')
    def target(g, r):
        l = [a.newlab(name+'_t') for _ in range(2)]
        a(f's_and_b32 s5, s{r}, 3\ns_mov_b32 s{g.sLdb}, 8192\ns_mov_b32 s14, {1024*8192}\ns_mov_b32 s12, s62\ns_mov_b32 s13, s63')
        a(f's_cmp_eq_u32 s5, 0\ns_cbranch_scc1 {l[0]}\ns_mov_b32 s12, s64\ns_mov_b32 s13, s65\ns_cmp_eq_u32 s5, 1\ns_cbranch_scc1 {l[0]}')
        a(f's_mov_b32 s12, s60\ns_mov_b32 s13, s61\ns_cmp_eq_u32 s5, 2\ns_cbranch_scc1 {l[0]}\ns_mov_b32 s12, s66\ns_mov_b32 s13, s67\ns_mov_b32 s{g.sLdb}, 7168\ns_mov_b32 s14, {1024*7168}')
        a.lab(l[0])
        a(f's_mov_b32 s{g.sXo}, s{r+1}\ns_mov_b32 s{g.sWn}, s{r+2}\ns_mov_b32 s94, {WS_SIZE}')
        g.setup()
    def nullhook(g):
        def h(a):
            l = a.newlab(name+'_h')
            a(f's_cmp_eq_u32 s{g.sCnt}, 1\ns_cbranch_scc0 {l}\ns_mov_b32 s94, 0\ns_mov_b32 s14, 0'); a.lab(l)
        return h
    def flags(a): a(f'buffer_store_dword v{vZ+1}, v{vZ}, s[8:11], s{sF1} offen sc1\nbuffer_store_dword v{vZ+1}, v{vZ}, s[8:11], s{sF2} offen sc1')
    def advance():
        for k in range(8): a(f's_mov_b32 s{R+k}, s{N+k}')
        a(f's_add_u32 s70, s70, 32\ns_addc_u32 s71, s71, 0\ns_load_dwordx8 s[{N}:{N+7}], s[70:71], 32')
    def wstamp(k):
        if light: a(f's_memrealtime s[52:53]\ns_waitcnt lgkmcnt(0)\ns_sub_u32 s52, s52, s50\nv_writelane_b32 v252, s52, {k}')
    def jstamp():
        if light: a(f's_memrealtime s[52:53]\ns_waitcnt lgkmcnt(0)\ns_sub_u32 s52, s52, s50\ns_add_u32 s54, s54, 1\ns_and_b32 s54, s54, 15\ns_mov_b32 m0, s54\ns_nop 3\nv_writelane_b32 v252, s52, m0')
    gs.init(); a('s_waitcnt lgkmcnt(0)')
    target(gs, R); a(f's_mov_b32 s{sRelu}, 0x80008000')
    for st in range(gs.S):
        for x in gs.dma(st)[gs.nxd:]: a(x)
    wpf = kw.get('wpf', 0)
    if wpf:
        a(f'v_lshrrev_b32 v36, 4, v0\nv_lshlrev_b32 v36, 13, v36\nv_and_b32 v37, 15, v0\nv_lshl_add_u32 v36, v37, 4, v36\nv_add_u32 v36, s{gs.sWn}, v36\ns_and_b32 s5, s3, 1\ns_mul_i32 s5, s5, {16*8192}\ns_add_u32 s5, s5, {256*8192}')
        for k in range(wpf): a(f'buffer_load_dwordx4 v[240:243], v36, s[12:15], s5 offen\ns_add_u32 s5, s5, {32*8192}')
    verify(a, 36, 1, gs.sWv)
    wstamp(0)
    for st in range(gs.S):
        for x in gs.dma(st)[:gs.nxd]: a(x)
    a('s_waitcnt vmcnt(0)\ns_barrier')
    for x in gs.reads(0, 0): a(x)
    a('.p2align 6'); a.lab(name+'_small')
    gs.trip(first=True, extra=10)
    a(f's_mov_b32 s{gs.sCnt}, 3')
    def smallhook(a):
        l = a.newlab(name+'_h')
        a(f's_cmp_eq_u32 s{gs.sCnt}, 1\ns_cbranch_scc0 {l}\ns_mov_b32 s94, 0\ns_mov_b32 s14, 0\ns_cmp_lt_u32 s{N}, {T_BIG}\ns_cbranch_scc0 {l}')
        target(gs, N); a.lab(l)
    gs.loop('0', smallhook)
    gs.epilogue_kb(R+3, sRelu, ' sc1')
    a(f's_mov_b32 s{sF1}, s{R+4}\ns_mov_b32 s{sF2}, s{R+5}\ns_waitcnt vmcnt(0)\ns_barrier'); flags(a)
    jstamp()
    advance()
    a(f's_cmp_lt_u32 s{R}, {T_BIG}\ns_waitcnt lgkmcnt(0)\ns_cbranch_scc1 {name}_small')
    gb.init(); a('s_waitcnt lgkmcnt(0)')
    target(gb, R); a(f's_mov_b32 s{gb.sNK}, 7\ns_mov_b32 s{sF1}, {OOB}\ns_mov_b32 s{sF2}, {OOB}')
    gb.prologue(zero=False)
    a(f's_mul_i32 s5, s49, 57344\nv_lshlrev_b32 v36, 4, v0\ns_mov_b32 s58, {3584*2048}\ns_mov_b32 s59, 0x20000')
    for m in range(2):
        a(f's_mov_b32 s56, s{66+2*m}\ns_mov_b32 s57, s{67+2*m}\ns_mov_b32 s6, s5')
        for k in range(16): a(f'buffer_load_dwordx4 v[240:243], v36, s[56:59], s6 offen' + ('\ns_add_u32 s6, s6, 4096' if k < 13 else ''))
    a('.p2align 6'); a.lab(name+'_big')
    gb.trip(first=True, extra=32, post=flags)
    a(f's_mov_b32 s{gb.sCnt}, 7')
    def chainhook(a):
        l, l2 = a.newlab(name+'_h'), a.newlab(name+'_h')
        a(f's_cmp_eq_u32 s{gb.sCnt}, 1\ns_cbranch_scc0 {l}\ns_mov_b32 s94, 0\ns_mov_b32 s14, 0\ns_and_b32 s5, s{N}, 0xf0\ns_cmp_eq_u32 s5, {T_BIG}\ns_cbranch_scc0 {l}')
        target(gb, N); a.lab(l)
    gb.loop('', chainhook)
    a(f's_and_b32 s5, s{R}, 3\ns_cmp_eq_u32 s5, 3\ns_cselect_b32 s{sRelu}, 0, 0x80008000')
    gb.epilogue_kb(R+3, sRelu, ' sc1')
    a(f's_mov_b32 s{sF1}, s{R+4}\ns_mov_b32 s{sF2}, s{R+5}')
    if light: a(f's_memrealtime s[52:53]\ns_waitcnt lgkmcnt(0)\ns_sub_u32 s52, s52, s50\ns_add_u32 s54, s54, 1\ns_and_b32 s54, s54, 15\ns_mov_b32 m0, s54\ns_nop 3\nv_writelane_b32 v252, s52, m0')
    advance()
    a(f's_and_b32 s5, s{R}, 0xf0\ns_cmp_eq_u32 s5, {T_BIG}\ns_waitcnt lgkmcnt(0)\ns_cbranch_scc1 {name}_big')
    a('s_waitcnt vmcnt(0)\ns_barrier'); flags(a)
    a(f's_load_dwordx2 s[16:17], s[0:1], 80\ns_mov_b32 s18, {M*2048}\ns_mov_b32 s19, 0x20000\ns_load_dwordx2 s[56:57], s[0:1], 40\ns_mov_b32 s98, {1<<22}')
    a.lab(name+'_next')
    a(f's_waitcnt lgkmcnt(0)\ns_and_b32 s5, s{R}, 0xf0\ns_cmp_eq_u32 s5, {T_ATT}\ns_cbranch_scc1 {name}_att\ns_cmp_gt_u32 s5, {T_ATT}\ns_cbranch_scc1 {name}_done')
    def spin(vaddr, sbase, width, tag):
        l0, l1 = a.newlab(name+tag), a.newlab(name+tag)
        a.lab(l0)
        if width == 2: a(f'buffer_load_dwordx2 v[38:39], v{vaddr}, s[8:11], s{sbase} offen sc1\ns_waitcnt vmcnt(0)\nv_max_u32 v38, v38, v39')
        else: a(f'buffer_load_dword v38, v{vaddr}, s[8:11], s{sbase} offen sc1\ns_waitcnt vmcnt(0)')
        a(f'v_cmp_eq_u32 vcc, -1, v38\ns_cbranch_vccz {l1}\ns_sub_u32 s98, s98, 1\ns_cbranch_scc1 {END}\ns_sleep 3\ns_branch {l0}')
        a.lab(l1)
    def tile(g, tag):
        g.init()
        lF = a.newlab(name+'_t')
        a(f's_mov_b32 s12, s68\ns_mov_b32 s13, s69\ns_mov_b32 s14, {3584*2048}\ns_bitcmp1_b32 s{R}, 0\ns_cbranch_scc0 {lF}\ns_mov_b32 s12, s56\ns_mov_b32 s13, s57\ns_mov_b32 s14, {4096*2048}')
        a.lab(lF)
        a(f's_mov_b32 s{g.sLdb}, 2048\ns_mov_b32 s{g.sXo}, s{R+1}\ns_mov_b32 s{g.sWn}, s{R+2}\ns_mov_b32 s94, {WS_SIZE}\ns_bfe_u32 s{g.sCnt}, s{R}, 0x80008')
        g.setup()
        a('s_barrier')
        for st in range(g.S):
            for x in g.dma(st)[g.nxd:]: a(x)
        lz = a.newlab(name+'_t')
        a(f's_and_b32 s5, s{R}, 9\ns_cmp_eq_u32 s5, 9\ns_cbranch_scc1 {lz}')
        for i in range(g.NB*g.MB*16): a(f'v_accvgpr_write_b32 a{i}, 0')
        a.lab(lz)
        a(f's_and_b32 s5, s{R+7}, 0xff\ns_bfe_u32 s6, s{R+7}, 0x80008\ns_lshr_b32 s7, s{R+7}, 16\nv_and_b32 v36, 15, v1\nv_lshlrev_b32 v36, 1, v36\nv_subrev_u32 v36, s5, v36\nv_cmp_gt_u32 s[24:25], s6, v36')
        a(f'v_cmp_gt_u32 vcc, s7, v1\nv_lshlrev_b32 v36, 3, v1\nv_mov_b32 v37, {OOB}\ns_and_b64 vcc, vcc, s[24:25]\nv_cndmask_b32 v36, v37, v36, vcc')
        spin(36, R+6, 2, '_d')
        for st in range(g.S):
            for x in g.dma(st)[:g.nxd]: a(x)
        a('s_waitcnt vmcnt(0)\ns_barrier')
        for x in g.reads(0, 0): a(x)
        g.loop(tag, nullhook(g))
        a(f's_lshl_b32 s58, s{R+3}, 1\ns_add_u32 s58, s58, {OFF_PART}\ns_mov_b32 s{sF1}, s{R+4}\ns_mov_b32 s{sF2}, {OOB}')
    def fin(g):
        a('v_mov_b32 v36, 0'); spin(36, R+5, 1, '_e')
        g.epilogue_fin(R+3, 58)
        a(f's_branch {name}_adv')
    tile(gs, '2')
    a(f's_bitcmp1_b32 s{R}, 2\ns_cbranch_scc1 {name}_split\ns_bitcmp1_b32 s{R}, 3\ns_cbranch_scc1 {name}_hold\ns_bitcmp1_b32 s{R}, 1\ns_cbranch_scc1 {name}_fin')
    gs.epilogue_part(58, R+3, 72, ' sc1')
    a('s_waitcnt vmcnt(0)\ns_barrier'); flags(a)
    a(f's_branch {name}_adv')
    a.lab(name+'_fin'); fin(gs)
    a.lab(name+'_hold')
    a(f's_waitcnt vmcnt(0) lgkmcnt(0)\ns_bitcmp1_b32 s{R}, 0\ns_cbranch_scc0 {name}_adv')
    gs.epilogue_out(R+3, 72)
    a(f's_branch {name}_adv')
    a.lab(name+'_split')
    a(f's_sub_u32 s59, s{R+5}, {TAB_T}\ns_lshl_b32 s59, s59, 13\ns_add_u32 s59, s59, {OFF_SCR}\ns_bfe_u32 s55, s{R}, 0x40014\ns_lshl_b32 s5, s55, 16\ns_add_u32 s5, s5, s59')
    a('s_waitcnt lgkmcnt(0)'); gs.epilogue_split(5)
    a('s_waitcnt vmcnt(0)\ns_barrier'); flags(a)
    a(f's_bfe_u32 s6, s{R}, 0x40010\nv_cmp_ge_u32 vcc, s6, v1\nv_lshlrev_b32 v36, 2, v1\nv_mov_b32 v37, {OOB}\ns_nop 0\nv_cndmask_b32 v36, v37, v36, vcc')
    spin(36, R+5, 1, '_g')
    for n in (2, 4, 8):
        l = a.newlab(name+'_c')
        if n < 8: a(f's_cmp_eq_u32 s6, {n}\ns_cbranch_scc0 {l}')
        gs.combine(n, 55, 59, R+3, 58)
        a(f's_branch {name}_adv')
        if n < 8: a.lab(l)
    a.lab(name+'_att')
    at = Attn(a, name+'_at', s0=20)
    a(f'v_lshrrev_b32 v2, 6, v0\ns_nop 0\nv_readfirstlane_b32 s5, v2\ns_mul_i32 s{at.sLds}, s5, 10240\ns_mul_i32 s6, s5, s{R+5}\ns_add_u32 s{at.sHead}, s{R+3}, s6\ns_mul_i32 s6, s5, s{R+6}\ns_add_u32 s{at.sSeg}, s{R+1}, s6\ns_mov_b32 s44, s{R+2}\ns_barrier\ns_cmp_ge_u32 s5, s{R+4}\ns_cbranch_scc1 {name}_adv')
    at.init()
    a.lab(name+'_atl')
    def prwait(a, lag, withq):
        l0, l1 = a.newlab(name+'_a'), a.newlab(name+'_a')
        a(f's_lshl_b32 s5, s{at.sHead}, 7\ns_add_u32 s5, s5, {TAB_PR}\ns_lshr_b32 s6, s{at.sSeg}, 3\ns_lshl_b32 s6, s6, 6\ns_lshr_b32 s7, s{at.sHead}, 1\ns_lshl_b32 s7, s7, 2\ns_add_u32 s6, s6, s7\ns_add_u32 s6, s6, {TAB_Q}\nv_mov_b32 v240, 0\ns_sub_i32 s45, s{at.sSeg}, {lag}\ns_max_i32 s45, s45, -1')
        a.lab(l0)
        a(f'buffer_load_dwordx4 v[244:247], v240, s[8:11], s5 offen sc1\n' + ('buffer_load_dword v241, v240, s[8:11], s6 offen sc1\n' if withq else '') + 's_waitcnt vmcnt(0)')
        a(f'v_min3_i32 v244, v244, v245, v246\nv_min_i32 v244, v244, v247\nv_cmp_ge_i32 vcc, s45, v244')
        if withq: a('v_cmp_eq_u32 s[42:43], -1, v241\ns_or_b64 vcc, vcc, s[42:43]')
        a(f's_cbranch_vccz {l1}\ns_sub_u32 s98, s98, 1\ns_cbranch_scc1 {END}\ns_sleep 2\ns_branch {l0}')
        a.lab(l1)
    prwait(a, 2, True)
    at.task(ldsc=' sc1', stsc=' sc1', wait_mem=lambda a: prwait(a, 0, False))
    a(f's_lshl_b32 s5, s{at.sSeg}, 7\ns_lshl_b32 s6, s{at.sHead}, 2\ns_add_u32 s5, s5, s6\ns_add_u32 s5, s5, {TAB_O}\nv_mov_b32 v240, 0\ns_waitcnt vmcnt(0)\nbuffer_store_dword v240, v240, s[8:11], s5 offen sc1')
    a(f's_add_u32 s{at.sSeg}, s{at.sSeg}, s{R+7}\ns_sub_u32 s44, s44, 1\ns_cmp_lg_u32 s44, 0\ns_cbranch_scc1 {name}_atl')
    a.lab(name+'_adv')
    jstamp()
    advance()
    a(f's_branch {name}_next')
    a.lab(name+'_done')
    if light:
        a('s_waitcnt vmcnt(0)'); wstamp(15)
        a(f's_lshl_b32 s5, s49, 6\ns_add_u32 s5, s5, {OFF_STAMP + 0x100000}\nv_lshlrev_b32 v36, 2, v0\nv_mov_b32 v37, {OOB}\nv_cmp_gt_u32 vcc, 16, v0\ns_nop 1\nv_cndmask_b32 v36, v37, v36, vcc\nbuffer_store_dword v252, v36, s[8:11], s5 offen')
    a.lab(END); a('s_endpgm')
    a('.p2align 6'); a.lab(name+'_jobs')
    for L in schedule(**pk):
        for r in L + [[T_END]+[0]*7]*0: a('.long ' + ', '.join(f'{x:#x}' for x in r))
    a('.long ' + ', '.join(['0xff'] + ['0']*15))
    return a.text()

def build(**kw):
    hdr = open('cdna_kernels/%s.s.ref' % KN).read().split('\n')
    hdr = [l for l in hdr[:hdr.index('.text')] if l.startswith(';') and '@launch' not in l]
    K = KN + '_kernel'
    L = [(K, 256, 131072)]
    s = '\n'.join(hdr) + '\n; @launch grid=(256,1,1) block=(256,1,1) lds=131072\n'
    s += '.amdgcn_target "amdgcn-amd-amdhsa--gfx950"\n.text\n'
    t = gen_main('mk', **kw)
    s += t.replace(khead('mk').replace('\n\n','\n'), khead(K), 1)
    s += '.section .rodata,"a"\n.p2align 6\n' + kdesc(K, 512, 256, 102)
    return s, L
if __name__ == '__main__':
    s, L = build()
    open('cdna_kernels/%s.s' % KN, 'w').write(s)
    print(len(s))
```
